```python
import torch

def _softmax(x, axis=-1):
    return torch.softmax(x, dim=axis)
def _gelu(x):
    return torch.nn.functional.gelu(x, approximate="tanh")
def _silu(x):
    return torch.nn.functional.silu(x)
def _sigmoid(x):
    return torch.sigmoid(x)
def _layernorm(x, axis=-1, eps=1e-5):
    m = x.mean(dim=axis, keepdim=True)
    v = x.var(dim=axis, keepdim=True, unbiased=False)
    return (x - m) / torch.sqrt(v + eps)
def _scatter_add(tgt, idx, src, axis=0):
    return tgt.clone().index_add_(axis, idx, src)
def _segment_sum(src, seg, n):
    out = torch.zeros((n,) + src.shape[1:], dtype=src.dtype)
    return out.index_add_(0, seg, src)
def _pad(x, pw):
    flat = tuple(v for pair in reversed(pw) for v in pair)
    return torch.nn.functional.pad(x, flat)

kernel_name = 'parallel_sum__spectral_gfnet__mixer_token_mlp__prompt'

def setup_inputs():

    _w = (lambda a: (lambda t: t.to(torch.bfloat16) if t.is_floating_point() else t)(torch.as_tensor(a)))
    def _A_setup():
        B, S, D = 1, 2048, 576
        Df = D // 2 + 1
        return {
            "x": _w((lambda *s: torch.randn(*s, dtype=torch.bfloat16) * 0.05)(B, S, D)),
            "w_r": _w((lambda *s: torch.randn(*s, dtype=torch.bfloat16) * 3.2)(S, Df) * 0.02),
            "w_i": _w((lambda *s: torch.randn(*s, dtype=torch.bfloat16) * 3.2)(S, Df) * 0.02),
        }
    _A_in = _A_setup()

    def _B_setup():
        B, S, D, F = 1, 2048, 576, 4608
        return {
            "x": _w((lambda *s: torch.randn(*s, dtype=torch.bfloat16) * 0.05)(B, S, D)),
            "w1": _w((lambda *s: torch.randn(*s, dtype=torch.bfloat16) * 0.4)(S, F) * (S ** -0.5)),
            "b1": _w((lambda *s: torch.randn(*s, dtype=torch.bfloat16) * 3.2)(F) * 0.02),
            "w2": _w((lambda *s: torch.randn(*s, dtype=torch.bfloat16) * 0.8)(F, S) * (F ** -0.5)),
            "b2": _w((lambda *s: torch.randn(*s, dtype=torch.bfloat16) * 3.2)(S) * 0.02),
        }
    _B_in = _B_setup()

    return {
        "A_x": _A_in["x"],
        "A_w_r": _A_in["w_r"],
        "A_w_i": _A_in["w_i"],
        "B_x": _B_in["x"],
        "B_w1": _B_in["w1"],
        "B_b1": _B_in["b1"],
        "B_w2": _B_in["w2"],
        "B_b2": _B_in["b2"],
    }

def reference(A_x, A_w_r, A_w_i, B_x, B_w1, B_b1, B_w2, B_b2):
    def _A_ref(x, w_r, w_i):
        B, S, D = x.shape
        X = (lambda x, axes=(-2,-1): torch.fft.rfft2(x.float(), dim=axes))(x, axes=(-2, -1))
        W = w_r + 1j * w_i
        X = X * W
        y = (lambda x, s, axes=(-2,-1): torch.fft.irfft2(x, s=s, dim=axes).to(torch.bfloat16))(X, (S, D), axes=(-2, -1))
        return y

    def _B_ref(x, w1, b1, w2, b2):
        B, S, D = x.shape
        h = _layernorm(x, axis=-1)
        u = torch.einsum("bsd,sf->bdf", h, w1) + b1
        u = _gelu(u)
        y = torch.einsum("bdf,fs->bds", u, w2) + b2
        return (lambda x, *d: x.permute(*d))(y, 0, 2, 1)

    x = A_x
    xn = _layernorm(x, axis=-1)
    return x + _A_ref(xn, A_w_r, A_w_i) + _B_ref(xn, B_w1, B_b1, B_w2, B_b2)
```

```python
import re
class Asm:
    def __init__(self):
        self.lines = []
    def __call__(self, text):
        for t in text.strip().split("\n"):
            t = t.strip()
            if not t: continue
            self.lines.append(t)
    def label(self, name): self.lines.append(name + ":")
    def comment(self, t): self.lines.append("; " + t)

REG = re.compile(r'^(-|abs\()?\s*([vsa])(\d+|\[(\d+):(\d+)\])\)?$')
def parse_reg(tok):
    tok = tok.strip()
    neg = tok.lstrip('-')
    m = re.match(r'^(?:abs\()?([vsa])(?:(\d+)|\[(\d+):(\d+)\])\)?$', neg)
    if m:
        k = m.group(1)
        if m.group(2) is not None: lo = hi = int(m.group(2))
        else: lo, hi = int(m.group(3)), int(m.group(4))
        return [(k, i) for i in range(lo, hi + 1)]
    if neg == 'vcc': return [('s', 'vcc')]
    if neg == 'exec': return [('s', 'exec')]
    if neg == 'm0': return [('s', 'm0')]
    return []

TRANS = ('v_exp_f32', 'v_log_f32', 'v_rcp_f32', 'v_rsq_f32', 'v_sqrt_f32', 'v_sin_f32', 'v_cos_f32')
def split_ops(rest):
    ops = []; depth = 0; cur = ''
    for ch in rest:
        if ch == '[': depth += 1
        if ch == ']': depth -= 1
        if ch == ',' and depth == 0: ops.append(cur.strip()); cur = ''
        else: cur += ch
    if cur.strip(): ops.append(cur.strip())
    return ops

class Ins:
    def __init__(self, text):
        self.text = text
        t = text.split(';')[0].strip()
        parts = t.split(None, 1)
        self.op = parts[0]
        rest = parts[1] if len(parts) > 1 else ''
        ops = split_ops(rest)
        self.mods = ''
        if ops:
            last = ops[-1].split(None, 1)
            ops[-1] = last[0]
            if len(last) > 1: self.mods = last[1]
        self.ops = ops
        op = self.op
        self.w = []; self.r = []
        self.is_mfma = op.startswith('v_mfma')
        self.is_valu = op.startswith('v_') and not self.is_mfma
        self.is_salu = op.startswith('s_')
        self.is_ds = op.startswith('ds_')
        self.is_vmem = op.startswith('buffer_') or op.startswith('global_')
        self.is_trans = any(op.startswith(x) for x in TRANS)
        self.is_dpp = 'dpp' in op or 'quad_perm' in self.mods or 'row_' in self.mods
        self.is_sdwa = 'sdwa' in op
        self.is_perml = op.startswith('v_permlane')
        self.is_rdlane = op.startswith('v_readfirstlane') or op.startswith('v_readlane')
        P = [parse_reg(o) for o in ops]
        flat = lambda L: [x for l in L for x in l]
        if self.is_mfma:
            self.w = P[0]; self.ra = P[1] + P[2]; self.rc = P[3]; self.r = self.ra + self.rc
            self.passes = 8 if '32x32' in op else 4
        elif self.is_valu:
            if op.startswith('v_cmp'):
                self.w = P[0]; self.r = flat(P[1:])
            elif self.is_perml:
                self.w = P[0] + P[1]; self.r = P[0] + P[1]
            elif op.startswith('v_add_co') or op.startswith('v_addc_co') or op.startswith('v_sub_co'):
                self.w = P[0] + P[1]; self.r = flat(P[2:])
            else:
                self.w = P[0]; self.r = flat(P[1:])
                if op.startswith('v_fmac') or op.startswith('v_pk_fmac') or 'UNUSED_PRESERVE' in self.mods or op.startswith('v_writelane'):
                    self.r = self.r + P[0]
                if op.startswith('v_cndmask') and len(ops) == 3: self.r.append(('s', 'vcc'))
        elif self.is_ds:
            if op.startswith('ds_read') or op.startswith('ds_bpermute') or op.startswith('ds_swizzle'):
                self.w = P[0]; self.r = flat(P[1:])
            else: self.r = flat(P)
        elif self.is_vmem:
            if 'lds' in self.mods.split() or op.startswith('buffer_wbl2') or op.startswith('buffer_inv'):
                self.r = flat(P)
                if 'lds' in self.mods.split(): self.r.append(('s', 'm0'))
            elif 'load' in op: self.w = P[0]; self.r = flat(P[1:])
            else: self.r = flat(P)
        elif self.is_salu:
            if op.startswith('s_cmp') or op.startswith('s_cbranch') or op.startswith('s_branch') or op in ('s_waitcnt', 's_barrier', 's_nop', 's_endpgm', 's_setprio', 's_sleep'):
                self.r = flat(P)
            else:
                self.w = P[0] if P else []; self.r = flat(P[1:])
                if 'saveexec' in op: self.w = self.w + [('s', 'exec')]
        self.states = 1
        if op == 's_nop': self.states = int(ops[0]) + 1

def insert_hazard_nops(lines, verbose=False):
    out = []
    hist = []
    def need(ins):
        req = 0
        dist = 0
        for p in reversed(hist):
            if dist > 20: break
            n = 0
            pw = set(p.w)
            rset = set(ins.r); wset = set(ins.w)
            if p.is_valu:
                vw = {x for x in pw if x[0] in 'va'}
                sw = {x for x in pw if x[0] == 's'}
                if ins.is_mfma and vw & rset: n = max(n, 2)
                if p.is_trans and ins.is_valu and not ins.is_trans and vw & (rset | wset): n = max(n, 1)
                if p.is_trans and ins.is_mfma and vw & rset: n = max(n, 2)
                if ins.is_dpp and vw & rset: n = max(n, 2)
                if ins.is_perml and vw & rset: n = max(n, 2)
                if ins.is_rdlane and vw & rset: n = max(n, 1)
                if p.is_sdwa and ins.is_valu and vw & (rset | wset): n = max(n, 1)
                if 'op_sel' in p.mods and ins.is_valu and vw & (rset | wset): n = max(n, 1)
                if sw:
                    if ins.is_valu and sw & rset: n = max(n, 4 if ins.is_rdlane else 2)
                    if ins.is_vmem and sw & rset: n = max(n, 5)
                    if ins.is_salu and sw & rset: n = max(n, 4)
                    if ins.is_mfma and ('s', 'exec') in sw: n = max(n, 4)
            if p.is_mfma:
                dw = pw
                if ins.is_mfma:
                    if dw & set(ins.ra): n = max(n, 8 if p.passes == 4 else 12)
                    if dw & set(ins.rc):
                        if set(ins.rc) == dw and ins.passes == p.passes: pass
                        else: n = max(n, 6 if p.passes == 4 else 10)
                    if dw & wset and not (set(ins.rc) == dw): n = max(n, 8 if p.passes == 4 else 12)
                else:
                    if dw & (rset | wset): n = max(n, 8 if p.passes == 4 else 12)
                    if ins.is_valu and set(p.rc) & wset: n = max(n, 3 if p.passes == 4 else 7)
            if p.is_vmem and ('store' in p.op) and ('x4' in p.op or 'x3' in p.op):
                if set(p.r) & wset and (ins.is_valu): n = max(n, 2)
                elif set(p.r) & wset: n = max(n, 1)
            if p.is_salu and ('s', 'm0') in pw and ('s', 'm0') in rset: n = max(n, 1)
            if n > dist: req = max(req, n - dist)
            dist += p.states
        return req
    for t in lines:
        if t.endswith(':') or t.startswith(';') or t.startswith('.'):
            out.append(t); continue
        ins = Ins(t)
        k = need(ins)
        while k > 0:
            c = min(k, 16)
            nop = Ins("s_nop %d" % (c - 1)); out.append(nop.text); hist.append(nop); k -= c
        out.append(t); hist.append(ins)
        if len(hist) > 40: hist.pop(0)
    return out

HEADER = """.amdgcn_target "amdgcn-amd-amdhsa--gfx950"
.text
"""
def kernel_text(name, lines, vgpr, sgpr=102, accum=None):
    if accum is None: accum = (vgpr + 3) // 4 * 4
    body = "\n".join(("    " + l) if not l.endswith(':') else l for l in lines)
    code = f""".globl {name}
.p2align 8
.type {name},@function
{name}:
{body}
"""
    desc = f""".amdhsa_kernel {name}
  .amdhsa_next_free_vgpr {vgpr}
  .amdhsa_next_free_sgpr {sgpr}
  .amdhsa_accum_offset {accum}
  .amdhsa_group_segment_fixed_size 0
  .amdhsa_kernarg_size 88
  .amdhsa_user_sgpr_count 2
  .amdhsa_user_sgpr_kernarg_segment_ptr 1
  .amdhsa_system_sgpr_workgroup_id_x 1
.end_amdhsa_kernel
"""
    return code, desc
```

```python
from asmlib import *
import struct
WS_H = 0
WS_Z = 0x240000
WS_WT = 0x490000
WS_UX = 0x6E0000
WS_YT = 0xCA0000
WS_TB = 0xEE0000
WS_END = 0xF00000
UXP = 10368
def f2u(x): return "0x%08x" % struct.unpack("<I", struct.pack("<f", x))[0]

def allreduce32(a, v, t):
    a(f"v_add_f32_dpp v{v}, v{v}, v{v} quad_perm:[1,0,3,2] row_mask:0xf bank_mask:0xf")
    a(f"v_add_f32_dpp v{v}, v{v}, v{v} quad_perm:[2,3,0,1] row_mask:0xf bank_mask:0xf")
    a(f"v_add_f32_dpp v{v}, v{v}, v{v} row_half_mirror row_mask:0xf bank_mask:0xf")
    a(f"v_add_f32_dpp v{v}, v{v}, v{v} row_mirror row_mask:0xf bank_mask:0xf")
    a(f"v_mov_b32 v{t}, v{v}")
    a(f"v_permlane16_swap_b32 v{v}, v{t}")
    a(f"v_add_f32 v{v}, v{v}, v{t}")

def layernorm(a, src, dst, xf, tmp):
    s, t, mb, r = tmp, tmp + 1, tmp + 2, tmp + 3
    for j in range(9):
        a(f"v_lshlrev_b32 v{xf+2*j}, 16, v{src+j}")
        a(f"v_and_b32 v{xf+2*j+1}, 0xffff0000, v{src+j}")
    a(f"v_add_f32 v{s}, v{xf}, v{xf+1}")
    a(f"v_add_f32 v{tmp+4}, v{xf+2}, v{xf+3}")
    for j in range(4, 18, 2):
        a(f"v_add_f32 v{s}, v{s}, v{xf+j}")
        a(f"v_add_f32 v{tmp+4}, v{tmp+4}, v{xf+j+1}")
    a(f"v_add_f32 v{s}, v{s}, v{tmp+4}")
    allreduce32(a, s, t)
    a(f"v_mul_f32 v{s}, {f2u(1/576.)}, v{s}")
    a(f"v_cvt_pk_bf16_f32 v{mb}, v{s}, v{s}")
    a(f"v_lshlrev_b32 v{mb}, 16, v{mb}")
    a(f"v_sub_f32 v{t}, v{xf}, v{s}")
    a(f"v_mul_f32 v{r}, v{t}, v{t}")
    a(f"v_sub_f32 v{t}, v{xf+1}, v{s}")
    a(f"v_mul_f32 v{tmp+4}, v{t}, v{t}")
    for j in range(2, 18, 2):
        a(f"v_sub_f32 v{t}, v{xf+j}, v{s}")
        a(f"v_sub_f32 v{tmp+5}, v{xf+j+1}, v{s}")
        a(f"v_fmac_f32 v{r}, v{t}, v{t}")
        a(f"v_fmac_f32 v{tmp+4}, v{tmp+5}, v{tmp+5}")
    a(f"v_add_f32 v{r}, v{r}, v{tmp+4}")
    allreduce32(a, r, t)
    a(f"v_mul_f32 v{r}, {f2u(1/576.)}, v{r}")
    a(f"v_cvt_pk_bf16_f32 v{r}, v{r}, v{r}")
    a(f"v_lshlrev_b32 v{r}, 16, v{r}")
    a(f"v_add_f32 v{r}, {f2u(1e-5)}, v{r}")
    a(f"v_cvt_pk_bf16_f32 v{r}, v{r}, v{r}")
    a(f"v_lshlrev_b32 v{r}, 16, v{r}")
    a(f"v_sqrt_f32 v{r}, v{r}")
    a(f"v_cvt_pk_bf16_f32 v{r}, v{r}, v{r}")
    a(f"v_lshlrev_b32 v{r}, 16, v{r}")
    a(f"v_rcp_f32 v{r}, v{r}")
    for j in range(9):
        a(f"v_sub_f32 v{xf+2*j}, v{xf+2*j}, v{mb}")
        a(f"v_sub_f32 v{xf+2*j+1}, v{xf+2*j+1}, v{mb}")
    for j in range(9):
        a(f"v_cvt_pk_bf16_f32 v{dst+j}, v{xf+2*j}, v{xf+2*j+1}")
    for j in range(9):
        a(f"v_lshlrev_b32 v{xf+2*j}, 16, v{dst+j}")
        a(f"v_and_b32 v{xf+2*j+1}, 0xffff0000, v{dst+j}")
    for j in range(18):
        a(f"v_mul_f32 v{xf+j}, v{xf+j}, v{r}")
    for j in range(9):
        a(f"v_cvt_pk_bf16_f32 v{dst+j}, v{xf+2*j}, v{xf+2*j+1}")

def sincos(a, ang, c, s):
    a(f"v_fract_f32 v{ang}, v{ang}")
    a(f"v_cos_f32 v{c}, v{ang}")
    a(f"v_sin_f32 v{s}, v{ang}")

def gen_k1(stamps=False):
    a = Asm()
    def st(i):
        if stamps:
            a(f's_memtime s[{60+2*i}:{61+2*i}]')
    st(0)
    a("s_cmp_ge_u32 s2, 256")
    a("s_cbranch_scc1 K1_END")
    a("s_load_dwordx2 s[4:5], s[0:1], 0")
    a("s_load_dwordx4 s[8:11], s[0:1], 8")
    a("s_load_dwordx2 s[6:7], s[0:1], 80")
    a("v_and_b32 v1, 63, v0")
    a("v_lshrrev_b32 v2, 6, v0")
    a("v_readfirstlane_b32 s3, v2")
    a("s_waitcnt lgkmcnt(0)")
    for base, (lo, n) in {12: (4, 2359296), 16: (8, 1183744), 20: (10, 1183744), 24: (6, WS_END)}.items():
        a(f"s_mov_b32 s{base}, s{lo}")
        a(f"s_mov_b32 s{base+1}, s{lo+1}")
        a(f"s_mov_b32 s{base+2}, {n}")
        a(f"s_mov_b32 s{base+3}, 0x00020000")
    XD = 10
    a("s_lshr_b32 s28, s2, 5")
    a("s_and_b32 s29, s2, 31")
    a("s_cmp_ge_u32 s3, 4")
    a("s_cbranch_scc1 K1_NOX")
    a("s_lshr_b32 s30, s28, 1")
    a("s_and_b32 s31, s28, 1")
    a("s_lshl_b32 s30, s30, 3")
    a("s_lshl_b32 s31, s31, 1")
    a("s_add_u32 s30, s30, s31")
    a("s_and_b32 s31, s3, 1")
    a("s_lshl_b32 s31, s31, 2")
    a("s_add_u32 s30, s30, s31")
    a("s_lshl_b32 s30, s30, 6")
    a("s_lshl_b32 s31, s29, 1")
    a("s_add_u32 s30, s30, s31")
    a("s_lshr_b32 s31, s3, 1")
    a("s_add_u32 s30, s30, s31")
    a("s_mul_i32 s30, s30, 1152")
    a("v_lshrrev_b32 v3, 5, v1")
    a("v_mul_u32_u24 v3, 73728, v3")
    a("v_and_b32 v4, 31, v1")
    a("v_lshl_add_u32 v3, v4, 2, v3")
    for j in range(9):
        a(f"buffer_load_dword v{XD+j}, v3, s[12:15], s30 offen offset:{128*j}")
    a.label("K1_NOX")
    st(1)
    WR, WI = 20, 28
    a("s_and_b32 s32, s2, 15")
    a("s_lshr_b32 s33, s2, 4")
    a("s_lshl_b32 s34, s32, 1")
    a("s_lshl_b32 s35, s33, 7")
    a("s_add_u32 s34, s34, s35")
    a("s_mul_i32 s34, s34, 578")
    a("v_lshlrev_b32 v5, 1, v0")
    a("v_cmp_gt_u32 vcc, 289, v0")
    a("s_and_saveexec_b64 s[36:37], vcc")
    for dl in range(2):
        for r in range(4):
            off = (dl + 32 * r) * 578
            a(f"s_add_u32 s35, s34, {off}")
            a(f"buffer_load_ushort v{WR+dl*4+r}, v5, s[16:19], s35 offen")
            a(f"buffer_load_ushort v{WI+dl*4+r}, v5, s[20:23], s35 offen")
    a("s_mov_b64 exec, s[36:37]")
    BC, BS = 40, 60
    TW = 80
    KF, QK, AN, T0, T1, T2 = 86, 87, 88, 89, 90, 91
    a("v_and_b32 v6, 15, v1")
    a("v_lshrrev_b32 v7, 4, v1")
    a("s_lshl_b32 s35, s3, 4")
    a("v_add_u32 v8, s35, v6")
    a(f"v_cvt_f32_u32 v{KF}, v8")
    a(f"v_mul_f32 v{KF}, {f2u(1/144.)}, v{KF}")
    a(f"v_cvt_f32_u32 v{QK}, v7")
    a(f"v_mul_f32 v{QK}, v{QK}, v{KF}")
    sc = f2u(1 / 24.)
    for t5 in range(5):
        for e in range(8):
            if t5 < 4:
                a(f"v_fmamk_f32 v{AN}, v{KF}, {f2u(float(4*t5+16*e))}, v{QK}")
            else:
                if e & 1: continue
                a(f"v_mul_f32 v{AN}, 4.0, v{QK}")
                a(f"v_fmamk_f32 v{AN}, v{KF}, {f2u(float(128+e//2))}, v{AN}")
            sincos(a, AN, T0, T1)
            if e & 1 == 0:
                a(f"v_mul_f32 v{92}, {sc}, v{T0}")
                a(f"v_mul_f32 v{93}, {sc}, v{T1}")
                if t5 == 4:
                    a(f"v_cvt_pk_f16_f32 v{BC+4*t5+e//2}, v92, 0")
                    a(f"v_cvt_pk_f16_f32 v{BS+4*t5+e//2}, v93, 0")
            else:
                a(f"v_mul_f32 v{T0}, {sc}, v{T0}")
                a(f"v_mul_f32 v{T1}, {sc}, v{T1}")
                a(f"v_cvt_pk_f16_f32 v{BC+4*t5+e//2}, v92, v{T0}")
                a(f"v_cvt_pk_f16_f32 v{BS+4*t5+e//2}, v93, v{T1}")
    for r in range(1, 4):
        a(f"v_mul_f32 v{AN}, {f2u(r/4.)}, v{KF}")
        sincos(a, AN, TW + 2 * (r - 1), TW + 2 * (r - 1) + 1)
    st(2)
    a("s_cmp_ge_u32 s2, 192")
    a("s_cbranch_scc1 K1_TABS")
    a("v_cmp_gt_u32 vcc, 288, v0")
    a("s_and_saveexec_b64 s[36:37], vcc")
    a("s_cbranch_execz K1_GDONE")
    a("s_mul_i32 s38, s2, 3")
    a("v_cmp_eq_u32 vcc, 0, v0")
    a(f"s_mov_b32 s40, 7456541")
    a(f"s_mov_b32 s41, 576")
    a("v_lshlrev_b32 v9, 2, v0")
    for i in range(3):
        a(f"s_add_u32 s39, s38, {i}")
        a(f"v_mul_u32_u24 v{T0}, s39, v0")
        a(f"v_mul_hi_u32 v{T1}, v{T0}, s40")
        a(f"v_mul_u32_u24 v{T1}, s41, v{T1}")
        a(f"v_sub_u32 v{T0}, v{T0}, v{T1}")
        a(f"v_cvt_f32_u32 v{AN}, v{T0}")
        a(f"v_mul_f32 v{AN}, {f2u(1/576.)}, v{AN}")
        a(f"v_cos_f32 v{T0}, v{AN}")
        a(f"v_sin_f32 v{T1}, v{AN}")
        a(f"v_mul_f32 v{T0}, {f2u(2/24.)}, v{T0}")
        a(f"v_mul_f32 v{T1}, {f2u(2/24.)}, v{T1}")
        a(f"v_cvt_pk_f16_f32 v{T0}, v{T0}, v{T1}")
        a("s_and_b32 s42, s39, 1")
        a("s_lshl_b32 s42, s42, 31")
        h24 = struct.unpack("<H", struct.pack("<e", 1 / 24.))[0]
        a(f"s_or_b32 s42, s42, {hex(h24 | (h24 << 16))}")
        a(f"v_mov_b32 v{T1}, s42")
        a(f"v_cndmask_b32 v{T0}, v{T0}, v{T1}, vcc")
        a(f"s_mul_i32 s42, s39, {UXP}")
        a(f"s_add_u32 s42, s42, {WS_UX}")
        a(f"buffer_store_dword v{T0}, v9, s[24:27], s42 offen")
    a.label("K1_GDONE")
    a("s_mov_b64 exec, s[36:37]")
    a("s_branch K1_TABDONE")
    a.label("K1_TABS")
    a("s_cmp_ge_u32 s3, 4")
    a("s_cbranch_scc1 K1_TABDONE")
    a("s_sub_u32 s38, s2, 192")
    a("s_lshl_b32 s38, s38, 8")
    a("v_add_u32 v9, s38, v0")
    I = 9
    L5, H, X0, X1, X2, X3 = 92, 93, 94, 95, 96, 97
    a(f"v_and_b32 v{L5}, 31, v1")
    a(f"v_lshrrev_b32 v{H}, 5, v1")
    a("s_cmp_ge_u32 s2, 200")
    a("s_cbranch_scc1 K1_TF64")
    a(f"v_and_b32 v{X0}, 3, v{I}")
    a(f"v_bfe_u32 v{X1}, v{I}, 2, 6")
    a(f"v_bfe_u32 v{X2}, v{I}, 8, 2")
    a(f"v_lshrrev_b32 v{X3}, 10, v{I}")
    a(f"v_lshlrev_b32 v{T0}, 3, v{X2}")
    a(f"v_lshrrev_b32 v{T1}, 1, v{X0}")
    a(f"v_lshl_add_u32 v{T0}, v{T1}, 2, v{T0}")
    a(f"v_lshrrev_b32 v{T1}, 5, v{X1}")
    a(f"v_lshl_add_u32 v{T0}, v{T1}, 1, v{T0}")
    a(f"v_and_b32 v{T1}, 1, v{X0}")
    a(f"v_add_u32 v{T0}, v{T0}, v{T1}")
    a(f"v_bfe_u32 v{T1}, v{X1}, 1, 4")
    a(f"v_lshl_add_u32 v{T1}, v{X3}, 4, v{T1}")
    a(f"v_mul_u32_u24 v{T0}, v{T0}, v{T1}")
    a(f"v_and_b32 v{T0}, 31, v{T0}")
    a(f"v_cvt_f32_u32 v{AN}, v{T0}")
    a(f"v_mul_f32 v{AN}, {f2u(1/32.)}, v{AN}")
    a(f"v_cos_f32 v{T0}, v{AN}")
    a(f"v_sin_f32 v{T1}, v{AN}")
    s32 = f2u(32 ** -0.5)
    a(f"v_mul_f32 v{T0}, {s32}, v{T0}")
    a(f"v_mul_f32 v{T1}, {s32}, v{T1}")
    a(f"v_cvt_pk_f16_f32 v{X2}, v{T0}, v{T1}")
    a(f"v_sub_f32 v{T1}, 0, v{T1}")
    a(f"v_cvt_pk_f16_f32 v{X3}, v{T1}, v{T0}")
    a(f"v_and_b32 v{X1}, 1, v{X1}")
    a(f"v_cmp_eq_u32 vcc, 1, v{X1}")
    a(f"v_cndmask_b32 v{X2}, v{X2}, v{X3}, vcc")
    a(f"v_lshlrev_b32 v{T0}, 2, v{I}")
    a(f"s_mov_b32 s38, {WS_TB}")
    a(f"buffer_store_dword v{X2}, v{T0}, s[24:27], s38 offen")
    a("s_branch K1_TABDONE")
    a.label("K1_TF64")
    a("s_cmp_ge_u32 s2, 216")
    a("s_cbranch_scc1 K1_TTW1")
    a(f"v_subrev_u32 v{I}, 2048, v{I}")
    a(f"v_and_b32 v{X0}, 3, v{I}")
    a(f"v_bfe_u32 v{X1}, v{I}, 2, 6")
    a(f"v_bfe_u32 v{X2}, v{I}, 8, 2")
    a(f"v_bfe_u32 v{X3}, v{I}, 10, 1")
    a(f"v_and_b32 v{T0}, 31, v{X1}")
    a(f"v_lshl_add_u32 v{T0}, v{X3}, 5, v{T0}")
    a(f"v_lshlrev_b32 v{T1}, 4, v{X2}")
    a(f"v_lshrrev_b32 v{T2}, 1, v{X0}")
    a(f"v_lshl_add_u32 v{T1}, v{T2}, 3, v{T1}")
    a(f"v_lshrrev_b32 v{T2}, 5, v{X1}")
    a(f"v_lshl_add_u32 v{T1}, v{T2}, 2, v{T1}")
    a(f"v_and_b32 v{T2}, 1, v{X0}")
    a(f"v_lshl_add_u32 v{T1}, v{T2}, 1, v{T1}")
    a(f"v_mul_u32_u24 v{T1}, v{T1}, v{T0}")
    a(f"v_add_u32 v{T2}, v{T1}, v{T0}")
    a(f"v_and_b32 v{T1}, 63, v{T1}")
    a(f"v_and_b32 v{T2}, 63, v{T2}")
    a(f"v_cvt_f32_u32 v{T1}, v{T1}")
    a(f"v_cvt_f32_u32 v{T2}, v{T2}")
    a(f"v_mul_f32 v{T1}, {f2u(1/64.)}, v{T1}")
    a(f"v_mul_f32 v{T2}, {f2u(1/64.)}, v{T2}")
    a(f"v_lshrrev_b32 v{X3}, 11, v{I}")
    a(f"v_cvt_f32_u32 v{X3}, v{X3}")
    a(f"v_fmamk_f32 v{T1}, v{X3}, {f2u(-0.25)}, v{T1}")
    a(f"v_fmamk_f32 v{T2}, v{X3}, {f2u(-0.25)}, v{T2}")
    a(f"v_cos_f32 v{T1}, v{T1}")
    a(f"v_cos_f32 v{T2}, v{T2}")
    a(f"v_mul_f32 v{T1}, {f2u(0.125)}, v{T1}")
    a(f"v_mul_f32 v{T2}, {f2u(0.125)}, v{T2}")
    a(f"v_cvt_pk_f16_f32 v{T1}, v{T1}, v{T2}")
    a(f"v_lshlrev_b32 v{T0}, 2, v{I}")
    a(f"s_mov_b32 s38, {WS_TB+0x2000}")
    a(f"buffer_store_dword v{T1}, v{T0}, s[24:27], s38 offen")
    a("s_branch K1_TABDONE")
    a.label("K1_TTW1")
    a("s_cmp_ge_u32 s2, 224")
    a("s_cbranch_scc1 K1_TTW2")
    a(f"v_subrev_u32 v{I}, 6144, v{I}")
    a(f"v_bfe_u32 v{X0}, v{I}, 6, 3")
    a(f"v_bfe_u32 v{X1}, v{I}, 9, 1")
    a(f"v_bfe_u32 v{X2}, v{I}, 10, 1")
    a(f"v_bfe_u32 v{T0}, v1, 1, 4")
    a(f"v_lshl_add_u32 v{T0}, v{X1}, 4, v{T0}")
    a(f"v_lshlrev_b32 v{T1}, 5, v{X2}")
    a(f"v_lshrrev_b32 v{T2}, 1, v{X0}")
    a(f"v_lshl_add_u32 v{T1}, v{T2}, 3, v{T1}")
    a(f"v_lshl_add_u32 v{T1}, v{H}, 2, v{T1}")
    a(f"v_and_b32 v{T2}, 1, v{X0}")
    a(f"v_lshl_add_u32 v{T1}, v{T2}, 1, v{T1}")
    a(f"v_mul_u32_u24 v{T1}, v{T1}, v{T0}")
    a(f"v_add_u32 v{T2}, v{T1}, v{T0}")
    a(f"v_cvt_f32_u32 v{T1}, v{T1}")
    a(f"v_cvt_f32_u32 v{T2}, v{T2}")
    a(f"v_mul_f32 v{T1}, {f2u(1/2048.)}, v{T1}")
    a(f"v_mul_f32 v{T2}, {f2u(1/2048.)}, v{T2}")
    a(f"v_cos_f32 v100, v{T1}")
    a(f"v_sin_f32 v101, v{T1}")
    a(f"v_cos_f32 v102, v{T2}")
    a(f"v_sin_f32 v103, v{T2}")
    a(f"v_lshlrev_b32 v{X0}, 31, v1")
    a(f"v_xor_b32 v101, v101, v{X0}")
    a(f"v_xor_b32 v103, v103, v{X0}")
    a(f"v_lshlrev_b32 v{T0}, 4, v{I}")
    a(f"s_mov_b32 s38, {WS_TB+0x6000}")
    a(f"buffer_store_dwordx4 v[100:103], v{T0}, s[24:27], s38 offen")
    a("s_branch K1_TABDONE")
    a.label("K1_TTW2")
    a("s_cmp_ge_u32 s2, 228")
    a("s_cbranch_scc1 K1_TABDONE")
    a(f"v_subrev_u32 v{I}, 8192, v{I}")
    a(f"v_bfe_u32 v{X0}, v{I}, 6, 2")
    a(f"v_bfe_u32 v{X1}, v{I}, 8, 1")
    a(f"v_bfe_u32 v{X2}, v{I}, 9, 1")
    a(f"v_lshl_add_u32 v{T0}, v{X1}, 5, v{L5}")
    a(f"v_lshlrev_b32 v{T1}, 4, v{X2}")
    a(f"v_lshl_add_u32 v{T1}, v{X0}, 2, v{T1}")
    a(f"v_lshl_add_u32 v{T1}, v{H}, 1, v{T1}")
    a(f"v_mul_u32_u24 v{T1}, v{T1}, v{T0}")
    a(f"v_add_u32 v{T2}, v{T1}, v{T0}")
    a(f"v_cvt_f32_u32 v{T1}, v{T1}")
    a(f"v_cvt_f32_u32 v{T2}, v{T2}")
    a(f"v_mul_f32 v{T1}, {f2u(1/2048.)}, v{T1}")
    a(f"v_mul_f32 v{T2}, {f2u(1/2048.)}, v{T2}")
    a(f"v_cos_f32 v100, v{T1}")
    a(f"v_sin_f32 v101, v{T1}")
    a(f"v_cos_f32 v102, v{T2}")
    a(f"v_sin_f32 v103, v{T2}")
    a(f"v_lshlrev_b32 v{T0}, 4, v{I}")
    a(f"s_mov_b32 s38, {WS_TB+0xE000}")
    a(f"buffer_store_dwordx4 v[100:103], v{T0}, s[24:27], s38 offen")
    a.label("K1_TABDONE")
    st(3)
    a("s_waitcnt vmcnt(0)")
    st(4)
    a("v_cmp_gt_u32 vcc, 289, v0")
    a("s_and_saveexec_b64 s[36:37], vcc")
    for i in range(8):
        a(f"v_lshlrev_b32 v{WR+i}, 16, v{WR+i}")
        a(f"v_lshlrev_b32 v{WI+i}, 16, v{WI+i}")
    for i in range(8):
        a(f"v_cvt_pk_f16_f32 v{WR+i}, v{WR+i}, v{WI+i}")
    a("s_lshr_b32 s38, s32, 3")
    a("s_lshl_b32 s38, s38, 4")
    a("s_add_u32 s38, s38, s33")
    a("s_lshl_b32 s38, s38, 8")
    a("s_and_b32 s39, s32, 7")
    a("s_lshl_b32 s39, s39, 5")
    a("s_add_u32 s38, s38, s39")
    a(f"s_add_u32 s38, s38, {WS_WT}")
    a("v_lshlrev_b32 v5, 13, v0")
    a(f"buffer_store_dwordx4 v[{WR}:{WR+3}], v5, s[24:27], s38 offen")
    a(f"buffer_store_dwordx4 v[{WR+4}:{WR+7}], v5, s[24:27], s38 offen offset:16")
    a("s_mov_b64 exec, s[36:37]")
    PITCH = 336
    a("s_cmp_ge_u32 s3, 4")
    a("s_cbranch_scc1 K1_NOLN")
    XN, HH, XF, TMP = 20, 30, 100, 120
    layernorm(a, XD, XN, XF, TMP)
    for j in range(9):
        a(f"v_lshlrev_b32 v{XF+2*j}, 16, v{XN+j}")
        a(f"v_and_b32 v{XF+2*j+1}, 0xffff0000, v{XN+j}")
    PK = 130
    for rs in range(2):
        for jj in range(4):
            a(f"v_cvt_pk_f16_f32 v{PK+8*rs+jj}, v{XF+2*(2*jj)+rs}, v{XF+2*(2*jj+1)+rs}")
        a(f"v_cvt_pk_f16_f32 v{PK+8*rs+4}, v{XF+16+rs}, 0")
    a("v_lshrrev_b32 v3, 5, v1")
    a("s_lshl_b32 s38, s3, 1")
    a("v_add_u32 v3, s38, v3")
    a("v_lshlrev_b32 v3, 2, v3")
    a("v_and_b32 v4, 1, v1")
    a("v_lshl_add_u32 v3, v4, 1, v3")
    a(f"v_mul_u32_u24 v3, {PITCH}, v3")
    a("v_bfe_u32 v4, v1, 1, 4")
    a("v_lshl_add_u32 v5, v4, 2, v3")
    a("v_lshl_add_u32 v3, v4, 4, v3")
    for rs in range(2):
        a(f"ds_write_b128 v3, v[{PK+8*rs}:{PK+8*rs+3}] offset:{PITCH*rs}")
        a(f"ds_write_b32 v5, v{PK+8*rs+4} offset:{PITCH*rs+256}")
    layernorm(a, XN, HH, XF, TMP)
    a("v_lshrrev_b32 v3, 5, v1")
    a("v_mul_u32_u24 v3, 73728, v3")
    a("v_and_b32 v4, 31, v1")
    a("v_lshl_add_u32 v3, v4, 2, v3")
    for j in range(9):
        a(f"buffer_store_dword v{HH+j}, v3, s[24:27], s30 offen offset:{128*j}")
    a.label("K1_NOLN")
    st(5)
    a("s_waitcnt lgkmcnt(0)")
    a("s_barrier")
    st(6)
    AF = 100
    AC = 140
    a("v_and_b32 v6, 15, v1")
    a("v_lshrrev_b32 v7, 4, v1")
    a(f"v_mul_u32_u24 v3, {PITCH}, v6")
    a("v_lshl_add_u32 v3, v7, 4, v3")
    for mt in range(2):
        for t5 in range(5):
            a(f"ds_read_b128 v[{AF+(mt*5+t5)*4}:{AF+(mt*5+t5)*4+3}], v3 offset:{mt*16*PITCH+64*t5}")
    for i in range(16): a(f"v_mov_b32 v{AC+i}, 0")
    a("s_waitcnt lgkmcnt(0)")
    for t5 in range(5):
        for mt in range(2):
            af = AF + (mt * 5 + t5) * 4
            a(f"v_mfma_f32_16x16x32_f16 v[{AC+mt*8}:{AC+mt*8+3}], v[{af}:{af+3}], v[{BC+4*t5}:{BC+4*t5+3}], v[{AC+mt*8}:{AC+mt*8+3}]")
            a(f"v_mfma_f32_16x16x32_f16 v[{AC+mt*8+4}:{AC+mt*8+7}], v[{af}:{af+3}], v[{BS+4*t5}:{BS+4*t5+3}], v[{AC+mt*8+4}:{AC+mt*8+7}]")
    a("s_lshl_b32 s38, s3, 4")
    a("v_add_u32 v8, s38, v6")
    a("v_lshlrev_b32 v9, 13, v8")
    a("v_lshl_add_u32 v10, v7, 2, v9")
    a("v_lshlrev_b32 v11, 2, v7")
    a("v_sub_u32 v11, v11, v9")
    a(f"v_add_u32 v11, {288*8192}, v11")
    a("s_lshl_b32 s38, s28, 10")
    a("s_lshl_b32 s39, s29, 5")
    a("s_add_u32 s38, s38, s39")
    a(f"s_add_u32 s38, s38, {WS_Z}")
    a(f"s_add_u32 s39, s38, {144*8192}")
    a(f"s_sub_u32 s40, s38, {144*8192}")
    a("v_cmp_gt_u32 vcc, 73, v8")
    a("s_and_saveexec_b64 s[36:37], vcc")
    P = 160
    for mt in range(2):
        C = AC + mt * 8; S = C + 4
        for r in range(1, 4):
            cr, sr = TW + 2 * (r - 1), TW + 2 * (r - 1) + 1
            a(f"v_mul_f32 v{P+2*r}, v{C+r}, v{cr}")
            a(f"v_fma_f32 v{P+2*r}, -v{S+r}, v{sr}, v{P+2*r}")
            a(f"v_mul_f32 v{P+2*r+1}, v{C+r}, v{sr}")
            a(f"v_fmac_f32 v{P+2*r+1}, v{S+r}, v{cr}")
        Ap, Aq, Bp, Bq, Cp, Cq, Dp, Dq = range(P + 8, P + 16)
        a(f"v_add_f32 v{Ap}, v{C}, v{P+4}")
        a(f"v_add_f32 v{Aq}, v{S}, v{P+5}")
        a(f"v_sub_f32 v{Bp}, v{C}, v{P+4}")
        a(f"v_sub_f32 v{Bq}, v{S}, v{P+5}")
        a(f"v_add_f32 v{Cp}, v{P+2}, v{P+6}")
        a(f"v_add_f32 v{Cq}, v{P+3}, v{P+7}")
        a(f"v_sub_f32 v{Dp}, v{P+2}, v{P+6}")
        a(f"v_sub_f32 v{Dq}, v{P+3}, v{P+7}")
        o = P + 16 + mt * 4
        a(f"v_add_f32 v{P}, v{Ap}, v{Cp}")
        a(f"v_add_f32 v{P+1}, v{Aq}, v{Cq}")
        a(f"v_cvt_pk_f16_f32 v{o}, v{P}, -v{P+1}")
        a(f"v_sub_f32 v{P}, v{Ap}, v{Cp}")
        a(f"v_sub_f32 v{P+1}, v{Aq}, v{Cq}")
        a(f"v_cvt_pk_f16_f32 v{o+1}, v{P}, v{P+1}")
        a(f"v_sub_f32 v{P}, v{Bp}, v{Dq}")
        a(f"v_add_f32 v{P+1}, v{Bq}, v{Dp}")
        a(f"v_cvt_pk_f16_f32 v{o+2}, v{P}, -v{P+1}")
        a(f"v_add_f32 v{P}, v{Bp}, v{Dq}")
        a(f"v_sub_f32 v{P+1}, v{Bq}, v{Dp}")
        a(f"v_cvt_pk_f16_f32 v{o+3}, v{P}, v{P+1}")
        a(f"buffer_store_dword v{o+3}, v11, s[24:27], s40 offen offset:{16*mt}")
        a(f"buffer_store_dword v{o+1}, v11, s[24:27], s38 offen offset:{16*mt}")
        a(f"buffer_store_dword v{o+2}, v10, s[24:27], s39 offen offset:{16*mt}")
        a(f"buffer_store_dword v{o}, v10, s[24:27], s38 offen offset:{16*mt}")
    st(7)
    if stamps:
        a('s_waitcnt vmcnt(0) lgkmcnt(0)')
        a('s_memtime s[76:77]')
        a('s_waitcnt lgkmcnt(0)')
        a('s_mov_b64 exec, 1')
        a('s_lshl_b32 s38, s2, 3')
        a('s_add_u32 s38, s38, s3')
        a('s_lshl_b32 s38, s38, 6')
        a('s_add_u32 s38, s38, 0x1000000')
        a('s_mov_b32 s26, 0x2000000')
        a('v_mov_b32 v1, 0')
        for i in range(9):
            a(f's_sub_u32 s39, s{60+2*i}, s60')
            a(f'v_mov_b32 v2, s39')
            a(f'buffer_store_dword v2, v1, s[24:27], s38 offen offset:{4*i}')
    a.label("K1_END")
    a("s_endpgm")
    return insert_hazard_nops(a.lines), 184
```

```python
from asmlib import *
from k1 import f2u, WS_H, WS_Z, WS_WT, WS_UX, WS_YT, WS_TB, WS_END, UXP
R = 5
STG = 28672
LDS = R * STG
NST = 32

def gemm1(a):
    a("s_and_b32 s28, s2, 7")
    a("s_lshr_b32 s29, s2, 3")
    a("s_mul_i32 s28, s28, 27")
    a("s_add_u32 s28, s28, s29")
    a("s_mul_i32 s29, s28, 10923")
    a("s_lshr_b32 s29, s29, 16")
    a("s_mul_i32 s30, s29, 6")
    a("s_sub_u32 s30, s28, s30")
    a("s_lshl_b32 s31, s29, 8")
    a("s_mul_i32 s32, s30, 192")
    VW, VH = 2, 3
    a("v_lshrrev_b32 v6, 4, v1")
    a("v_bfe_u32 v7, v1, 1, 3")
    a("v_and_b32 v8, 1, v1")
    a(f"v_mul_u32_u24 v{VW}, 9216, v7")
    a(f"v_lshl_add_u32 v{VW}, v6, 5, v{VW}")
    a(f"v_lshl_add_u32 v{VW}, v8, 4, v{VW}")
    for i in range(3):
        a(f"v_add_u32 v6, {64*i}, v1")
        a("v_cmp_le_u32 vcc, 96, v6")
        a("v_cndmask_b32 v7, 0, 1, vcc")
        a("v_mul_u32_u24 v8, 96, v7")
        a("v_sub_u32 v6, v6, v8")
        a("v_lshrrev_b32 v8, 4, v6")
        a("v_bfe_u32 v9, v6, 1, 3")
        a("v_lshl_add_u32 v9, v7, 3, v9")
        a(f"v_mul_u32_u24 v{VH+i}, 1152, v9")
        a(f"v_lshl_add_u32 v{VH+i}, v8, 5, v{VH+i}")
        a("v_and_b32 v8, 1, v6")
        a(f"v_lshl_add_u32 v{VH+i}, v8, 4, v{VH+i}")
    a(f"s_mul_i32 s33, s3, {16*9216}")
    a("s_add_u32 s33, s33, s31")
    a(f"s_mul_i32 s34, s3, {16*1152}")
    a("s_add_u32 s34, s34, s32")
    a("s_lshl_b32 s35, s3, 12")
    a("s_mul_i32 s36, s3, 3072")
    a("s_add_u32 s36, s36, 16384")
    a("s_mov_b32 s37, 0")
    def dma():
        for i in range(4):
            a(f"s_add_u32 s38, s37, s35")
            if i: a(f"s_add_u32 s38, s38, {1024*i}")
            a("s_mov_b32 m0, s38")
            off = (i >> 1) * 8 * 9216 + (i & 1) * 128
            a(f"s_add_u32 s39, s33, {off}")
            a(f"buffer_load_dwordx4 v{VW}, s[12:15], s39 offen lds")
        for i in range(3):
            a(f"s_add_u32 s38, s37, s36")
            if i: a(f"s_add_u32 s38, s38, {1024*i}")
            a("s_mov_b32 m0, s38")
            a("s_nop 0")
            a(f"buffer_load_dwordx4 v{VH+i}, s[16:19], s34 offen lds")
        a(f"s_add_u32 s33, s33, {64*9216}")
        a(f"s_add_u32 s34, s34, {64*1152}")
        a(f"s_add_u32 s37, s37, {STG}")
        a(f"s_cmp_ge_u32 s37, {LDS}")
        a("s_cselect_b32 s37, 0, s37")
    for i in range(R - 1): dma()
    VA, VB, VA0, VB0, VA1, VB1 = 6, 7, 8, 9, 10, 11
    a("v_lshrrev_b32 v12, 5, v1")
    a("v_bfe_u32 v13, v1, 4, 1")
    a("v_bfe_u32 v14, v1, 2, 2")
    a("v_and_b32 v15, 3, v1")
    a("v_lshlrev_b32 v13, 7, v13")
    a("v_lshl_add_u32 v13, v14, 5, v13")
    a("v_lshl_add_u32 v13, v15, 3, v13")
    a("s_and_b32 s40, s3, 1")
    a("s_lshr_b32 s41, s3, 1")
    a("s_lshl_b32 s42, s40, 10")
    a(f"v_lshl_add_u32 v{VA}, v12, 11, v13")
    a(f"v_add_u32 v{VA}, s42, v{VA}")
    a("s_mul_i32 s42, s41, 768")
    a("s_add_u32 s42, s42, 16384")
    a(f"v_mul_u32_u24 v{VB}, 1536, v12")
    a(f"v_add_u32 v{VB}, v{VB}, v13")
    a(f"v_add_u32 v{VB}, s42, v{VB}")
    ACC = 16
    FR = [64, 64 + 28]
    for i in range(48): a(f"v_mov_b32 v{ACC+i}, 0")
    def reads(setn, va, vb, ks):
        f = FR[setn]
        for mi in range(4):
            a(f"ds_read_b64_tr_b16 v[{f+4*mi}:{f+4*mi+1}], v{va} offset:{ks*8192+mi*256}")
            a(f"ds_read_b64_tr_b16 v[{f+4*mi+2}:{f+4*mi+3}], v{va} offset:{ks*8192+mi*256+4096}")
        for ni in range(3):
            a(f"ds_read_b64_tr_b16 v[{f+16+4*ni}:{f+16+4*ni+1}], v{vb} offset:{ks*6144+ni*256}")
            a(f"ds_read_b64_tr_b16 v[{f+16+4*ni+2}:{f+16+4*ni+3}], v{vb} offset:{ks*6144+ni*256+3072}")
    def mfmas(setn):
        f = FR[setn]
        for mi in range(4):
            for ni in range(3):
                c = ACC + (mi * 3 + ni) * 4
                a(f"v_mfma_f32_16x16x32_bf16 v[{c}:{c+3}], v[{f+4*mi}:{f+4*mi+3}], v[{f+16+4*ni}:{f+16+4*ni+3}], v[{c}:{c+3}]")
    a(f"s_waitcnt vmcnt({7*(R-2)})")
    a("s_barrier")
    a("s_mov_b32 s43, 0")
    a(f"v_mov_b32 v{VA0}, v{VA}")
    a(f"v_mov_b32 v{VB0}, v{VB}")
    reads(0, VA0, VB0, 0)
    a("s_mov_b32 s44, 0")
    a.label("G1_LOOP")
    reads(1, VA0, VB0, 1)
    a("s_waitcnt lgkmcnt(14)")
    mfmas(0)
    a(f"s_add_u32 s43, s43, {STG}")
    a(f"s_cmp_ge_u32 s43, {LDS}")
    a("s_cselect_b32 s43, 0, s43")
    a(f"v_add_u32 v{VA0}, s43, v{VA}")
    a(f"v_add_u32 v{VB0}, s43, v{VB}")
    a(f"s_waitcnt vmcnt({7*(R-3)})")
    a("s_barrier")
    dma()
    reads(0, VA0, VB0, 0)
    a("s_waitcnt lgkmcnt(14)")
    mfmas(1)
    a("s_add_u32 s44, s44, 1")
    a(f"s_cmp_lt_u32 s44, {NST}")
    a("s_cbranch_scc1 G1_LOOP")
    a("s_waitcnt vmcnt(0) lgkmcnt(0)")
    a("s_barrier")
    a("v_lshrrev_b32 v2, 4, v1")
    a("v_lshlrev_b32 v3, 3, v2")
    a("s_lshl_b32 s45, s40, 7")
    a("s_add_u32 s45, s45, s31")
    B1R = 64
    for mi in range(4):
        a(f"buffer_load_dwordx2 v[{B1R+2*mi}:{B1R+2*mi+1}], v3, s[20:23], s45 offen offset:{32*mi}")
    OP = 272
    a("v_and_b32 v4, 15, v1")
    a("s_mul_i32 s46, s41, 48")
    a("v_add_u32 v4, s46, v4")
    a(f"v_mul_u32_u24 v4, {OP}, v4")
    a("s_lshl_b32 s46, s40, 7")
    a("v_add_u32 v4, s46, v4")
    a("v_add_u32 v4, v4, v3")
    a("s_waitcnt vmcnt(0)")
    BF = 72
    for mi in range(4):
        a(f"v_lshlrev_b32 v{BF+4*mi}, 16, v{B1R+2*mi}")
        a(f"v_and_b32 v{BF+4*mi+1}, 0xffff0000, v{B1R+2*mi}")
        a(f"v_lshlrev_b32 v{BF+4*mi+2}, 16, v{B1R+2*mi+1}")
        a(f"v_and_b32 v{BF+4*mi+3}, 0xffff0000, v{B1R+2*mi+1}")
    c1 = f2u(0.044715); c2 = f2u(-2 * 0.7978845608028654 * 1.4426950408889634)
    a(f"s_mov_b32 s47, {c1}")
    a(f"s_mov_b32 s48, {c2}")
    T = 90
    for mi in range(4):
        for ni in range(3):
            c = ACC + (mi * 3 + ni) * 4
            a(f"v_cvt_pk_bf16_f32 v{T}, v{c}, v{c+1}")
            a(f"v_cvt_pk_bf16_f32 v{T+1}, v{c+2}, v{c+3}")
            a(f"v_lshlrev_b32 v{c}, 16, v{T}")
            a(f"v_and_b32 v{c+1}, 0xffff0000, v{T}")
            a(f"v_lshlrev_b32 v{c+2}, 16, v{T+1}")
            a(f"v_and_b32 v{c+3}, 0xffff0000, v{T+1}")
            for r in range(4): a(f"v_add_f32 v{c+r}, v{c+r}, v{BF+4*mi+r}")
            a(f"v_cvt_pk_bf16_f32 v{T}, v{c}, v{c+1}")
            a(f"v_cvt_pk_bf16_f32 v{T+1}, v{c+2}, v{c+3}")
            a(f"v_lshlrev_b32 v{c}, 16, v{T}")
            a(f"v_and_b32 v{c+1}, 0xffff0000, v{T}")
            a(f"v_lshlrev_b32 v{c+2}, 16, v{T+1}")
            a(f"v_and_b32 v{c+3}, 0xffff0000, v{T+1}")
            for r in range(4): a(f"v_mul_f32 v{T+2+r}, v{c+r}, v{c+r}")
            for r in range(4): a(f"v_fma_f32 v{T+2+r}, v{T+2+r}, s47, 1.0")
            for r in range(4): a(f"v_mul_f32 v{T+2+r}, v{T+2+r}, v{c+r}")
            for r in range(4): a(f"v_mul_f32 v{T+2+r}, s48, v{T+2+r}")
            for r in range(4): a(f"v_exp_f32 v{T+2+r}, v{T+2+r}")
            for r in range(4): a(f"v_add_f32 v{T+2+r}, 1.0, v{T+2+r}")
            for r in range(4): a(f"v_rcp_f32 v{T+2+r}, v{T+2+r}")
            for r in range(4): a(f"v_mul_f32 v{c+r}, v{c+r}, v{T+2+r}")
            a(f"v_cvt_pk_bf16_f32 v{c}, v{c}, v{c+1}")
            a(f"v_cvt_pk_bf16_f32 v{c+1}, v{c+2}, v{c+3}")
            a(f"ds_write_b64 v4, v[{c}:{c+1}] offset:{ni*16*OP+mi*32}")
    a("s_waitcnt lgkmcnt(0)")
    a("s_barrier")
    a("v_and_b32 v2, 15, v0")
    a("v_lshrrev_b32 v3, 4, v0")
    a(f"v_mul_u32_u24 v4, {OP}, v3")
    a("v_lshl_add_u32 v4, v2, 4, v4")
    a(f"v_mul_u32_u24 v5, {UXP}, v3")
    a("v_lshl_add_u32 v5, v2, 4, v5")
    a(f"s_mul_i32 s45, s30, {96*UXP}")
    a("s_add_u32 s45, s45, s31")
    a(f"s_add_u32 s45, s45, {WS_UX+1152}")
    for i in range(6):
        a(f"ds_read_b128 v[{16+4*i}:{16+4*i+3}], v4 offset:{16*OP*i}")
    a("s_waitcnt lgkmcnt(0)")
    for i in range(6):
        a(f"buffer_store_dwordx4 v[{16+4*i}:{16+4*i+3}], v5, s[24:27], s45 offen")
        a(f"s_add_u32 s45, s45, {16*UXP}")
    a("s_endpgm")

def fft(a):
    B1F, F64C, F64S, XIN, ACC, YP, TMP = 16, 48, 80, 112, 144, 208, 240
    LW = 49152
    a("s_sub_u32 s28, s2, 216")
    a("s_lshl_b32 s28, s28, 3")
    a("s_add_u32 s28, s28, s3")
    a("s_min_u32 s29, s28, 288")
    a("v_lshlrev_b32 v2, 4, v1")
    a("s_mul_i32 s30, s3, 6144")
    for i in range(6):
        a(f"s_add_u32 s31, s30, {1024*i}")
        a("s_mov_b32 m0, s31")
        a(f"s_add_u32 s32, s31, {WS_TB+0x6000}")
        a("buffer_load_dwordx4 v2, s[24:27], s32 offen lds")
    a("s_lshl_b32 s33, s29, 13")
    a("s_lshl_b32 s34, s3, 13")
    a(f"s_add_u32 s34, s34, {LW}")
    for i in range(8):
        a(f"s_add_u32 s31, s34, {1024*i}")
        a("s_mov_b32 m0, s31")
        a(f"s_add_u32 s32, s33, {WS_WT+1024*i}")
        a("buffer_load_dwordx4 v2, s[24:27], s32 offen lds")
    a("v_lshrrev_b32 v3, 5, v1")
    a("v_lshlrev_b32 v3, 10, v3")
    a("v_and_b32 v4, 31, v1")
    a("v_lshl_add_u32 v3, v4, 4, v3")
    for t in range(4):
        a(f"s_add_u32 s35, s33, {WS_Z+2048*t}")
        for mt in range(2):
            f = XIN + (mt * 4 + t) * 4
            a(f"buffer_load_dwordx4 v[{f}:{f+3}], v3, s[24:27], s35 offen offset:{512*mt}")
    for i in range(24):
        if i % 4 == 0: a(f"s_mov_b32 s35, {WS_TB+1024*i}")
        f = B1F + 4 * i
        a(f"buffer_load_dwordx4 v[{f}:{f+3}], v2, s[24:27], s35 offen offset:{1024*(i%4)}")
    SG, SGN = 5, 6
    a("v_and_b32 v7, 1, v1")
    a("v_lshlrev_b32 v7, 31, v7")
    a(f"v_xor_b32 v{SG}, 1.0, v7")
    a(f"v_xor_b32 v{SGN}, -1.0, v7")
    a("v_lshrrev_b32 v8, 5, v1")
    a("v_bfe_u32 v9, v1, 1, 4")
    a("v_lshl_add_u32 v8, v8, 4, v9")
    a("v_lshlrev_b32 v8, 4, v8")
    a("v_add_u32 v8, s34, v8")
    a("s_waitcnt vmcnt(0)")
    a("s_barrier")
    a("s_cmp_gt_u32 s28, 288")
    a("s_cbranch_scc1 K2_END")
    def zero(base, n):
        for i in range(n): a(f"v_mov_b32 v{base+i}, 0")
    def mf(d, x, y):
        a(f"v_mfma_f32_32x32x16_f16 v[{d}:{d+15}], v[{x}:{x+3}], v[{y}:{y+3}], v[{d}:{d+15}]")
    zero(ACC, 64)
    for mt in range(2):
        for nt in range(2):
            for t in range(4):
                mf(ACC + (mt * 2 + nt) * 16, XIN + (mt * 4 + t) * 4, B1F + (nt * 4 + t) * 4)
    for mt in range(2):
        for nt in range(2):
            tile = mt * 2 + nt; D = ACC + tile * 16
            for half in range(2):
                for jp in range(4 * half, 4 * half + 4):
                    a(f"ds_read_b128 v[{TMP+4*(jp&3)}:{TMP+4*(jp&3)+3}], v2 offset:{(tile*8+jp)*1024}")
                a("s_waitcnt lgkmcnt(0)")
                for jp in range(4 * half, 4 * half + 4):
                    w = TMP + 4 * (jp & 3)
                    for e in range(2):
                        j = 2 * jp + e
                        a(f"v_mul_f32 v{w+2*e}, v{D+j}, v{w+2*e}")
                        a(f"v_fmac_f32_dpp v{w+2*e}, v{D+j}, v{w+2*e+1} quad_perm:[1,0,3,2] row_mask:0xf bank_mask:0xf")
                    u = jp >> 2
                    dst = XIN + (nt * 4 + 2 * mt + u) * 4 + (jp & 3)
                    a(f"v_cvt_pk_f16_f32 v{dst}, v{w}, v{w+2}")
    for nt in range(2):
        for mt2 in range(2):
            P = ACC + mt2 * 32; Q = P + 16
            zero(P, 32)
            for ks in range(4):
                mf(P, F64C + (mt2 * 4 + ks) * 4, XIN + (nt * 4 + ks) * 4)
            for ks in range(4):
                mf(Q, F64S + (mt2 * 4 + ks) * 4, XIN + (nt * 4 + ks) * 4)
            for g in range(4):
                a(f"ds_read_b128 v[{TMP+4*g}:{TMP+4*g+3}], v8 offset:{(nt*2+mt2)*2048+g*512}")
            for j in range(16):
                a(f"v_fmac_f32_dpp v{P+j}, v{Q+j}, v{SG} quad_perm:[1,0,3,2] row_mask:0xf bank_mask:0xf")
            a("s_waitcnt lgkmcnt(0)")
            for j in range(16):
                w = TMP + j
                a(f"v_mul_f32_dpp v{Q+j}, v{P+j}, v{SGN} quad_perm:[1,0,3,2] row_mask:0xf bank_mask:0xf")
                a(f"v_fma_mix_f32 v{Q+j}, v{Q+j}, v{w}, 0 op_sel:[0,1,0] op_sel_hi:[0,1,0]")
                a(f"v_fma_mix_f32 v{P+j}, v{P+j}, v{w}, v{Q+j} op_sel:[0,0,0] op_sel_hi:[0,1,0]")
            for jp in range(8):
                dst = YP + (nt * 4 + 2 * mt2 + (jp >> 2)) * 4 + (jp & 3)
                a(f"v_cvt_pk_f16_f32 v{dst}, v{P+2*jp}, v{P+2*jp+1}")
    for mt3 in range(2):
        for nt3 in range(2):
            P = ACC + nt3 * 32; Q = P + 16
            zero(P, 32)
            for ks in range(4):
                mf(P, YP + (mt3 * 4 + ks) * 4, F64C + (nt3 * 4 + ks) * 4)
            for ks in range(4):
                mf(Q, YP + (mt3 * 4 + ks) * 4, F64S + (nt3 * 4 + ks) * 4)
            tile = mt3 * 2 + nt3
            for jq in range(4):
                a(f"ds_read_b128 v[{TMP+4*jq}:{TMP+4*jq+3}], v2 offset:{32768+(tile*4+jq)*1024}")
            for pp in range(8):
                j = 2 * pp
                a(f"v_sub_f32 v{P+j}, v{P+j}, v{Q+j+1}")
                a(f"v_add_f32 v{P+j+1}, v{P+j+1}, v{Q+j}")
            a("s_waitcnt lgkmcnt(0)")
            for pp in range(8):
                j = 2 * pp; c = TMP + 2 * pp; s = c + 1
                a(f"v_mul_f32 v{Q+j}, v{P+j}, v{c}")
                a(f"v_fma_f32 v{Q+j}, -v{P+j+1}, v{s}, v{Q+j}")
                a(f"v_mul_f32 v{Q+j+1}, v{P+j}, v{s}")
                a(f"v_fmac_f32 v{Q+j+1}, v{P+j+1}, v{c}")
                dst = XIN + (nt3 * 4 + 2 * mt3 + (pp >> 2)) * 4 + (pp & 3)
                a(f"v_cvt_pk_f16_f32 v{dst}, v{Q+j}, -v{Q+j+1}")
    zero(ACC, 64)
    for mt4 in range(2):
        for nt4 in range(2):
            for ks in range(4):
                mf(ACC + (mt4 * 2 + nt4) * 16, XIN + (mt4 * 4 + ks) * 4, B1F + (nt4 * 4 + ks) * 4)
    a("v_bfe_u32 v9, v1, 1, 4")
    a("v_lshlrev_b32 v9, 7, v9")
    a("v_lshrrev_b32 v10, 5, v1")
    a("v_lshl_add_u32 v9, v10, 4, v9")
    a("v_and_b32 v10, 1, v1")
    a("v_lshl_add_u32 v9, v10, 12, v9")
    a("s_lshl_b32 s36, s28, 13")
    a("s_cmp_eq_u32 s28, 288")
    a("s_cselect_b32 s36, 4096, s36")
    a(f"s_add_u32 s36, s36, {WS_YT}")
    a("s_cmp_eq_u32 s28, 0")
    a("s_cbranch_scc1 F_MASK")
    a("s_cmp_lg_u32 s28, 288")
    a("s_cbranch_scc1 F_NOMASK")
    a.label("F_MASK")
    a("s_mov_b32 exec_lo, 0x55555555")
    a("s_mov_b32 exec_hi, 0x55555555")
    a.label("F_NOMASK")
    O = XIN
    n = 0
    for mt4 in range(2):
        for nt4 in range(2):
            D = ACC + (mt4 * 2 + nt4) * 16
            for gam in range(2):
                o = O + 4 * n; n += 1
                for gg in range(2):
                    g = 2 * gam + gg
                    a(f"v_cvt_pk_f16_f32 v{o+2*gg}, v{D+4*g}, v{D+4*g+1}")
                    a(f"v_cvt_pk_f16_f32 v{o+2*gg+1}, v{D+4*g+2}, v{D+4*g+3}")
    a("s_mov_b64 s[40:41], exec")
    a("s_mov_b64 exec, -1")
    for i in range(8):
        o = O + 4 * i
        a(f"v_permlane32_swap_b32 v{o}, v{o+2}")
        a(f"v_permlane32_swap_b32 v{o+1}, v{o+3}")
    a("s_mov_b64 exec, s[40:41]")
    n = 0
    for mt4 in range(2):
        for nt4 in range(2):
            for gam in range(2):
                o = O + 4 * n; n += 1
                a(f"buffer_store_dwordx4 v[{o}:{o+3}], v9, s[24:27], s36 offen offset:{nt4*2048+mt4*64+gam*32}")

def gen_k2():
    a = Asm()
    a("s_cmp_ge_u32 s2, 256")
    a("s_cbranch_scc1 K2_END")
    a("s_load_dwordx4 s[4:7], s[0:1], 32")
    a("s_load_dwordx2 s[8:9], s[0:1], 80")
    a("v_and_b32 v1, 63, v0")
    a("v_lshrrev_b32 v2, 6, v0")
    a("v_readfirstlane_b32 s3, v2")
    a("s_waitcnt lgkmcnt(0)")
    for base, (lo, n) in {12: (4, 2048 * 9216), 16: (8, 2359296), 20: (6, 9216), 24: (8, WS_END)}.items():
        a(f"s_mov_b32 s{base}, s{lo}")
        a(f"s_mov_b32 s{base+1}, s{lo+1}")
        a(f"s_mov_b32 s{base+2}, {n}")
        a(f"s_mov_b32 s{base+3}, 0x00020000")
    a("s_cmp_ge_u32 s2, 216")
    a("s_cbranch_scc1 K2_FFT")
    a("s_cmp_ge_u32 s3, 4")
    a("s_cbranch_scc1 K2_END")
    gemm1(a)
    a.label("K2_FFT")
    fft(a)
    a.label("K2_END")
    a("s_endpgm")
    return insert_hazard_nops(a.lines), 256
```

```python
from asmlib import *
from k1 import f2u, WS_H, WS_Z, WS_WT, WS_UX, WS_YT, WS_TB, WS_END, UXP
R = 8
STG = 17408
LDS = 147456
BLOCK = 256
NA, NB = 9, 72

def gen_k3(stamps=False):
    a = Asm()
    a("s_cmp_ge_u32 s2, 256")
    a("s_cbranch_scc1 K3_END")
    a("s_load_dwordx2 s[4:5], s[0:1], 0")
    a("s_load_dwordx4 s[8:11], s[0:1], 48")
    a("s_load_dwordx2 s[6:7], s[0:1], 64")
    a("s_load_dwordx2 s[28:29], s[0:1], 80")
    a("v_and_b32 v1, 63, v0")
    a("v_lshrrev_b32 v2, 6, v0")
    a("v_readfirstlane_b32 s3, v2")
    a("s_waitcnt lgkmcnt(0)")
    a(f"s_add_u32 s16, s28, {WS_YT}")
    a("s_addc_u32 s17, s29, 0")
    a(f"s_mov_b32 s18, {576*4096}")
    a("s_mov_b32 s19, 0x00020000")
    for base, (lo, n) in {12: (28, WS_END), 20: (4, 2359296), 24: (6, 2359296), 32: (10, 4096)}.items():
        a(f"s_mov_b32 s{base}, s{lo}")
        a(f"s_mov_b32 s{base+1}, s{lo+1}")
        a(f"s_mov_b32 s{base+2}, {n}")
        a(f"s_mov_b32 s{base+3}, 0x00020000")
    a("s_and_b32 s36, s2, 7")
    a("s_lshr_b32 s37, s2, 3")
    a("s_lshl_b32 s36, s36, 2")
    a("s_and_b32 s38, s37, 3")
    a("s_add_u32 s36, s36, s38")
    a("s_lshr_b32 s37, s37, 2")
    a("s_lshl_b32 s38, s36, 7")
    a("s_mul_i32 s39, s37, 72")
    VU0, VU1, VUQ, VS0, VS1 = 2, 3, 4, 5, 6
    a("v_lshrrev_b32 v7, 3, v1")
    a("v_and_b32 v8, 7, v1")
    a("v_lshrrev_b32 v9, 4, v1")
    a("v_xor_b32 v10, v8, v9")
    a(f"v_mul_u32_u24 v11, {UXP}, v7")
    a(f"v_lshl_add_u32 v{VU0}, v10, 4, v11")
    a("v_xor_b32 v10, 4, v10")
    a(f"v_lshl_add_u32 v{VU1}, v10, 4, v11")
    a(f"v_add_u32 v{VU1}, {8*UXP-1024}, v{VU1}")
    a("v_xor_b32 v10, s3, v8")
    a(f"v_lshl_add_u32 v{VUQ}, v10, 4, v11")
    a("v_bfe_u32 v10, v1, 4, 1")
    a("v_lshlrev_b32 v10, 2, v10")
    a("v_xor_b32 v10, v10, v8")
    a("v_lshlrev_b32 v11, 12, v7")
    a(f"v_lshl_add_u32 v{VS0}, v10, 4, v11")
    a(f"v_add_u32 v{VS1}, {8*4096-1024}, v{VS0}")
    a(f"s_mul_i32 s40, s39, {UXP}")
    a(f"s_add_u32 s40, s40, {WS_UX}")
    a(f"s_mul_i32 s41, s3, {16*UXP}")
    a("s_add_u32 s41, s41, s40")
    a(f"s_mul_i32 s42, s3, {2*UXP}")
    a("s_add_u32 s42, s42, s40")
    a(f"s_add_u32 s42, s42, {64*UXP}")
    a("s_lshl_b32 s43, s3, 16")
    a("s_add_u32 s43, s43, s38")
    a("s_mov_b32 s44, s43")
    a("s_lshl_b32 s45, s3, 11")
    a("s_lshl_b32 s46, s3, 8")
    a("s_add_u32 s46, s46, 8192")
    a("s_add_u32 s47, s45, 9216")
    a("s_mov_b32 s48, 0")
    a("s_mov_b32 s49, 0")
    def dma():
        a(f"s_cmp_eq_u32 s49, {NA}")
        a("s_cselect_b32 s16, s8, s16")
        a("s_cselect_b32 s17, s9, s17")
        a(f"s_cselect_b32 s18, {4608*4096}, s18")
        a("s_cselect_b32 s43, s44, s43")
        a("s_add_u32 s50, s48, s45")
        a("s_mov_b32 m0, s50")
        a("s_add_u32 s50, s48, s47")
        a(f"buffer_load_dwordx4 v{VU0}, s[12:15], s41 offen lds")
        a(f"buffer_load_dwordx4 v{VU1}, s[12:15], s41 offen offset:1024 lds")
        a("s_mov_b32 m0, s50")
        a("s_add_u32 s50, s48, s46")
        a(f"buffer_load_dwordx4 v{VS0}, s[16:19], s43 offen lds")
        a(f"buffer_load_dwordx4 v{VS1}, s[16:19], s43 offen offset:1024 lds")
        a("s_mov_b32 m0, s50")
        a("s_mov_b64 exec, 0xffff")
        a(f"buffer_load_dwordx4 v{VUQ}, s[12:15], s42 offen lds")
        a("s_mov_b64 exec, -1")
        a("s_add_u32 s41, s41, 128")
        a("s_add_u32 s42, s42, 128")
        a(f"s_add_u32 s43, s43, {64*4096}")
        a("s_add_u32 s49, s49, 1")
        a(f"s_add_u32 s48, s48, {STG}")
        a(f"s_cmp_ge_u32 s48, {R*STG}")
        a("s_cselect_b32 s48, 0, s48")
    for i in range(R - 1): dma()
    VA, VB0, VB1, CA, CB0, CB1 = 7, 8, 9, 10, 11, 12
    a("v_and_b32 v13, 31, v1")
    a("v_lshrrev_b32 v14, 5, v1")
    a("s_lshl_b32 s51, s3, 1")
    a("v_add_u32 v15, s51, v14")
    a("v_bfe_u32 v16, v1, 1, 3")
    a("v_xor_b32 v15, v15, v16")
    a("v_lshlrev_b32 v13, 7, v13")
    a(f"v_lshl_add_u32 v{VA}, v15, 4, v13")
    a("v_bfe_u32 v13, v1, 2, 2")
    a("v_lshl_add_u32 v15, v14, 3, v13")
    a("s_lshl_b32 s51, s3, 4")
    a("v_add_u32 v15, s51, v15")
    a("v_lshlrev_b32 v15, 7, v15")
    a("v_bfe_u32 v16, v1, 4, 1")
    a("v_lshlrev_b32 v16, 1, v16")
    a("v_bfe_u32 v17, v1, 1, 1")
    a("v_add_u32 v16, v16, v17")
    a("v_bfe_u32 v17, v1, 3, 1")
    a("v_lshlrev_b32 v17, 2, v17")
    a("v_xor_b32 v16, v16, v17")
    a("v_lshl_add_u32 v15, v16, 4, v15")
    a("v_and_b32 v16, 1, v1")
    a("v_lshl_add_u32 v15, v16, 3, v15")
    a(f"v_add_u32 v{VB0}, 9216, v15")
    a(f"v_xor_b32 v{VB1}, 64, v{VB0}")
    ACA, ACB = 16, 112
    FR = [208, 228]
    def reads(setn):
        f = FR[setn]
        for mt in range(3):
            a(f"ds_read_b128 v[{f+4*mt}:{f+4*mt+3}], v{CA} offset:{mt*4096}")
        for nt, cb in enumerate((CB0, CB1)):
            a(f"ds_read_b64_tr_b16 v[{f+12+4*nt}:{f+12+4*nt+1}], v{cb}")
            a(f"ds_read_b64_tr_b16 v[{f+12+4*nt+2}:{f+12+4*nt+3}], v{cb} offset:512")
    def mfmas(setn, ty, acc, first=False):
        f = FR[setn]
        for mt in range(3):
            for nt in range(2):
                c = acc + (mt * 2 + nt) * 16
                src = "0" if first else f"v[{c}:{c+15}]"
                a(f"v_mfma_f32_32x32x16_{ty} v[{c}:{c+15}], v[{f+4*mt}:{f+4*mt+3}], v[{f+12+4*nt}:{f+12+4*nt+3}], {src}")
    def addrs():
        a(f"v_add_u32 v{CA}, s52, v{VA}")
        a(f"v_add_u32 v{CB0}, s52, v{VB0}")
        a(f"v_add_u32 v{CB1}, s52, v{VB1}")
    def it(par, ty, acc, first=False):
        a(f"s_add_u32 s52, s52, {STG}")
        a(f"s_cmp_ge_u32 s52, {R*STG}")
        a("s_cselect_b32 s52, 0, s52")
        addrs()
        a(f"s_waitcnt vmcnt({5*(R-3)})")
        a("s_barrier")
        dma()
        reads(1 - par)
        a("s_waitcnt lgkmcnt(7)")
        mfmas(par, ty, acc, first)
    a(f"s_waitcnt vmcnt({5*(R-2)})")
    a("s_barrier")
    a("s_mov_b32 s52, 0")
    addrs()
    reads(0)
    it(0, "f16", ACA, True)
    a("s_mov_b32 s53, 0")
    a.label("K3_LA")
    it(1, "f16", ACA); it(0, "f16", ACA)
    a("s_add_u32 s53, s53, 1")
    a("s_cmp_lt_u32 s53, 4")
    a("s_cbranch_scc1 K3_LA")
    it(1, "bf16", ACB, True)
    a("s_mov_b32 s53, 0")
    a.label("K3_LB")
    it(0, "bf16", ACB); it(1, "bf16", ACB)
    a("s_add_u32 s53, s53, 1")
    a("s_cmp_lt_u32 s53, 35")
    a("s_cbranch_scc1 K3_LB")
    it(0, "bf16", ACB)
    a("s_waitcnt vmcnt(0) lgkmcnt(0)")
    a("s_barrier")
    a("v_and_b32 v2, 31, v1")
    a("v_lshrrev_b32 v3, 5, v1")
    a("v_mul_u32_u24 v4, 1152, v2")
    a("v_lshl_add_u32 v4, v3, 3, v4")
    a("s_lshl_b32 s54, s36, 6")
    a("s_mul_i32 s54, s54, 1152")
    a("s_lshl_b32 s55, s39, 1")
    a("s_add_u32 s54, s54, s55")
    a("s_lshl_b32 s55, s3, 4")
    a("s_add_u32 s54, s54, s55")
    XR = 208
    for mt in range(2):
        for nt in range(2):
            a(f"s_add_u32 s55, s54, {nt*32*1152+mt*64}")
            a(f"buffer_load_dwordx2 v[{XR+(mt*2+nt)*2}:{XR+(mt*2+nt)*2+1}], v4, s[20:23], s55 offen")
    a("s_cmp_lg_u32 s3, 0")
    a("s_cbranch_scc1 K3_NOX2")
    for nt in range(2):
        a(f"s_add_u32 s55, s54, {nt*32*1152+128}")
        a(f"buffer_load_dwordx2 v[{XR+(4+nt)*2}:{XR+(4+nt)*2+1}], v4, s[20:23], s55 offen")
    a.label("K3_NOX2")
    a("v_lshlrev_b32 v5, 1, v2")
    for nt in range(2):
        a(f"buffer_load_ushort v{220+nt}, v5, s[32:35], s38 offen offset:{64*nt}")
    a("v_lshlrev_b32 v6, 4, v1")
    for g in range(4):
        a(f"s_cmp_eq_u32 s3, {g}")
        a(f"s_cbranch_scc1 K3_SKW{g}")
        a(f"s_sub_u32 s55, s3, {g+1}")
        a("s_and_b32 s55, s55, 3")
        a("s_mul_i32 s55, s55, 12288")
        a(f"s_add_u32 s55, s55, {g*36864}")
        a("v_add_u32 v7, s55, v6")
        for st_, acc in enumerate((ACA, ACB)):
            for t in range(6):
                if t >= 4 and g != 0: continue
                c = acc + t * 16 + 4 * g
                a(f"ds_write_b128 v7, v[{c}:{c+3}] offset:{(st_*6+t)*1024}")
        a.label(f"K3_SKW{g}")
    a("s_waitcnt lgkmcnt(0)")
    a("s_barrier")
    SUM = 160
    for g in range(4):
        a(f"s_cmp_lg_u32 s3, {g}")
        a(f"s_cbranch_scc1 K3_SKR{g}")
        a(f"v_add_u32 v7, {g*36864}, v6")
        nt_ = 6 if g == 0 else 4
        tmp = 224
        units = [(st_, t) for st_ in range(2) for t in range(nt_)]
        for ui, (st_, t) in enumerate(units):
            tb = tmp + (ui & 1) * 12
            for sl in range(3):
                a(f"ds_read_b128 v[{tb+4*sl}:{tb+4*sl+3}], v7 offset:{sl*12288+(st_*6+t)*1024}")
            if ui > 0:
                a("s_waitcnt lgkmcnt(3)")
                pst, pt = units[ui - 1]; pb = tmp + ((ui - 1) & 1) * 12
                c = (ACA, ACB)[pst] + pt * 16 + 4 * g
                for sl in range(3):
                    a(f"v_pk_add_f32 v[{c}:{c+1}], v[{c}:{c+1}], v[{pb+4*sl}:{pb+4*sl+1}]")
                    a(f"v_pk_add_f32 v[{c+2}:{c+3}], v[{c+2}:{c+3}], v[{pb+4*sl+2}:{pb+4*sl+3}]")
        a("s_waitcnt lgkmcnt(0)")
        pst, pt = units[-1]; pb = tmp + ((len(units) - 1) & 1) * 12
        c = (ACA, ACB)[pst] + pt * 16 + 4 * g
        for sl in range(3):
            a(f"v_pk_add_f32 v[{c}:{c+1}], v[{c}:{c+1}], v[{pb+4*sl}:{pb+4*sl+1}]")
            a(f"v_pk_add_f32 v[{c+2}:{c+3}], v[{c+2}:{c+3}], v[{pb+4*sl+2}:{pb+4*sl+3}]")
        a("s_waitcnt vmcnt(0)")
        a("v_lshlrev_b32 v220, 16, v220")
        a("v_lshlrev_b32 v221, 16, v221")
        for t in range(nt_):
            mt, nt = t >> 1, t & 1
            A_ = ACA + t * 16 + 4 * g; B_ = ACB + t * 16 + 4 * g
            xr = XR + t * 2
            T = 224
            a(f"v_cvt_pk_bf16_f32 v{T}, v{A_}, v{A_+1}")
            a(f"v_cvt_pk_bf16_f32 v{T+1}, v{A_+2}, v{A_+3}")
            a(f"v_cvt_pk_bf16_f32 v{T+2}, v{B_}, v{B_+1}")
            a(f"v_cvt_pk_bf16_f32 v{T+3}, v{B_+2}, v{B_+3}")
            def unp(dst, src):
                a(f"v_lshlrev_b32 v{dst}, 16, v{src}")
                a(f"v_and_b32 v{dst+1}, 0xffff0000, v{src}")
            unp(A_, T); unp(A_ + 2, T + 1); unp(B_, T + 2); unp(B_ + 2, T + 3)
            unp(T + 4, xr); unp(T + 6, xr + 1)
            for r in range(4):
                a(f"v_add_f32 v{A_+r}, v{A_+r}, v{T+4+r}")
                a(f"v_add_f32 v{B_+r}, v{B_+r}, v{220+nt}")
            a(f"v_cvt_pk_bf16_f32 v{T}, v{A_}, v{A_+1}")
            a(f"v_cvt_pk_bf16_f32 v{T+1}, v{A_+2}, v{A_+3}")
            a(f"v_cvt_pk_bf16_f32 v{T+2}, v{B_}, v{B_+1}")
            a(f"v_cvt_pk_bf16_f32 v{T+3}, v{B_+2}, v{B_+3}")
            unp(A_, T); unp(A_ + 2, T + 1); unp(B_, T + 2); unp(B_ + 2, T + 3)
            for r in range(4):
                a(f"v_add_f32 v{A_+r}, v{A_+r}, v{B_+r}")
            a(f"v_cvt_pk_bf16_f32 v{A_}, v{A_}, v{A_+1}")
            a(f"v_cvt_pk_bf16_f32 v{A_+1}, v{A_+2}, v{A_+3}")
            a(f"s_add_u32 s55, s54, {nt*32*1152+mt*64}")
            a(f"buffer_store_dwordx2 v[{A_}:{A_+1}], v4, s[24:27], s55 offen")
        a("s_branch K3_END")
        a.label(f"K3_SKR{g}")
    a.label("K3_END")
    a("s_endpgm")
    return insert_hazard_nops(a.lines), 256
```

```python
import sys
from asmlib import *
import k1
import os
STAMPS = bool(os.environ.get('STAMPS'))
def build(which=("k1",)):
    hdr = open("parallel_sum__spectral_gfnet__mixer_token_mlp__prompt.s.ref").read().split("\n")
    top = [l for l in hdr if l.startswith(";") and "@launch" not in l and "Override" not in l and "grid=ceil" not in l]
    launches = []; codes = []; descs = []
    if "k1" in which:
        lines, nv = k1.gen_k1(stamps=STAMPS)
        c, d = kernel_text("k1_kernel", lines, nv); codes.append(c); descs.append(d)
        launches.append("; @launch kernel=k1_kernel grid=(256,1,1) block=(320,1,1) lds=11264")
    if "k2" in which:
        import k2
        lines, nv = k2.gen_k2()
        c, d = kernel_text("k2_kernel", lines, nv); codes.append(c); descs.append(d)
        launches.append(f"; @launch kernel=k2_kernel grid=(256,1,1) block=(512,1,1) lds={k2.LDS}")
    if "k3" in which:
        import k3
        lines, nv = k3.gen_k3()
        c, d = kernel_text("k3_kernel", lines, nv); codes.append(c); descs.append(d)
        launches.append(f"; @launch kernel=k3_kernel grid=(256,1,1) block=({k3.BLOCK},1,1) lds={k3.LDS}")
    return "\n".join(top + launches) + "\n" + HEADER + "\n".join(codes) + '.section .rodata,"a"\n.p2align 6\n' + "\n".join(descs)
if __name__ == "__main__":
    which = sys.argv[2:] or ["k1", "k2", "k3"]
    open(sys.argv[1], "w").write(build(which))
```

```python
from asmlib import *
import struct
WS_H = 0
WS_Z = 0x240000
WS_WT = 0x490000
WS_UX = 0x6E0000
WS_YT = 0xCA0000
WS_TB = 0xEE0000
WS_END = 0xF00000
UXP = 10368
K1_BLOCK = 640
K1_LDS = 11264
import os
PF_ROWS = int(os.environ.get('PF_ROWS', 2048))
def f2u(x): return "0x%08x" % struct.unpack("<I", struct.pack("<f", x))[0]

def allreduce64(a, v, t):
    a(f"v_add_f32_dpp v{v}, v{v}, v{v} quad_perm:[1,0,3,2] row_mask:0xf bank_mask:0xf")
    a(f"v_add_f32_dpp v{v}, v{v}, v{v} quad_perm:[2,3,0,1] row_mask:0xf bank_mask:0xf")
    a(f"v_add_f32_dpp v{v}, v{v}, v{v} row_half_mirror row_mask:0xf bank_mask:0xf")
    a(f"v_add_f32_dpp v{v}, v{v}, v{v} row_mirror row_mask:0xf bank_mask:0xf")
    a(f"v_mov_b32 v{t}, v{v}")
    a(f"v_permlane16_swap_b32 v{v}, v{t}")
    a(f"v_add_f32 v{v}, v{v}, v{t}")
    a(f"v_mov_b32 v{t}, v{v}")
    a(f"v_permlane32_swap_b32 v{v}, v{t}")
    a(f"v_add_f32 v{v}, v{v}, v{t}")

def layernorm(a, src, dst, xf, tmp):
    s, t, mb, r = tmp, tmp + 1, tmp + 2, tmp + 4
    MK = tmp + 6
    for j in range(5):
        a(f"v_lshlrev_b32 v{xf+2*j}, 16, v{src+j}")
        a(f"v_and_b32 v{xf+2*j+1}, 0xffff0000, v{src+j}")
    D = tmp + 8
    a(f"v_pk_add_f32 v[{D}:{D+1}], v[{xf}:{xf+1}], v[{xf+2}:{xf+3}]")
    a(f"v_pk_add_f32 v[{D+2}:{D+3}], v[{xf+4}:{xf+5}], v[{xf+6}:{xf+7}]")
    a(f"v_pk_add_f32 v[{D}:{D+1}], v[{D}:{D+1}], v[{xf+8}:{xf+9}]")
    a(f"v_pk_add_f32 v[{D}:{D+1}], v[{D}:{D+1}], v[{D+2}:{D+3}]")
    a(f"v_add_f32 v{s}, v{D}, v{D+1}")
    allreduce64(a, s, t)
    a(f"v_mul_f32 v{s}, {f2u(1/576.)}, v{s}")
    a(f"v_cvt_pk_bf16_f32 v{mb}, v{s}, v{s}")
    a(f"v_mov_b32 v{t}, v{s}")
    a(f"v_lshlrev_b32 v{mb}, 16, v{mb}")
    a(f"v_mov_b32 v{mb+1}, v{mb}")
    for j in range(5):
        a(f"v_pk_add_f32 v[{D+2*j}:{D+2*j+1}], v[{xf+2*j}:{xf+2*j+1}], v[{s}:{t}] neg_lo:[0,1] neg_hi:[0,1]")
    a(f"v_pk_mul_f32 v[{D+8}:{D+9}], v[{D+8}:{D+9}], v[{MK}:{MK+1}]")
    a(f"v_pk_mul_f32 v[{D}:{D+1}], v[{D}:{D+1}], v[{D}:{D+1}]")
    for j in range(1, 5):
        a(f"v_pk_fma_f32 v[{D}:{D+1}], v[{D+2*j}:{D+2*j+1}], v[{D+2*j}:{D+2*j+1}], v[{D}:{D+1}]")
    a(f"v_add_f32 v{r}, v{D}, v{D+1}")
    allreduce64(a, r, r + 1)
    a(f"v_mul_f32 v{r}, {f2u(1/576.)}, v{r}")
    a(f"v_cvt_pk_bf16_f32 v{r}, v{r}, v{r}")
    a(f"v_lshlrev_b32 v{r}, 16, v{r}")
    a(f"v_add_f32 v{r}, {f2u(1e-5)}, v{r}")
    a(f"v_cvt_pk_bf16_f32 v{r}, v{r}, v{r}")
    a(f"v_lshlrev_b32 v{r}, 16, v{r}")
    a(f"v_sqrt_f32 v{r}, v{r}")
    for j in range(5):
        a(f"v_pk_add_f32 v[{xf+2*j}:{xf+2*j+1}], v[{xf+2*j}:{xf+2*j+1}], v[{mb}:{mb+1}] neg_lo:[0,1] neg_hi:[0,1]")
    a(f"v_cvt_pk_bf16_f32 v{r}, v{r}, v{r}")
    a(f"v_lshlrev_b32 v{r}, 16, v{r}")
    a(f"v_rcp_f32 v{r}, v{r}")
    for j in range(5):
        a(f"v_cvt_pk_bf16_f32 v{dst+j}, v{xf+2*j}, v{xf+2*j+1}")
    a(f"v_mov_b32 v{r+1}, v{r}")
    for j in range(5):
        a(f"v_lshlrev_b32 v{xf+2*j}, 16, v{dst+j}")
        a(f"v_and_b32 v{xf+2*j+1}, 0xffff0000, v{dst+j}")
    for j in range(5):
        a(f"v_pk_mul_f32 v[{xf+2*j}:{xf+2*j+1}], v[{xf+2*j}:{xf+2*j+1}], v[{r}:{r+1}]")
    a(f"v_pk_mul_f32 v[{xf+8}:{xf+9}], v[{xf+8}:{xf+9}], v[{MK}:{MK+1}]")
    for j in range(5):
        a(f"v_cvt_pk_bf16_f32 v{dst+j}, v{xf+2*j}, v{xf+2*j+1}")

def sincos(a, ang, c, s):
    a(f"v_fract_f32 v{ang}, v{ang}")
    a(f"v_cos_f32 v{c}, v{ang}")
    a(f"v_sin_f32 v{s}, v{ang}")

def gen_k1(stamps=False):
    a = Asm()
    def st(i):
        if stamps:
            a(f's_memtime s[{60+2*i}:{61+2*i}]')
    st(0)
    a("s_cmp_ge_u32 s2, 256")
    a("s_cbranch_scc1 K1_END")
    a("s_load_dwordx2 s[4:5], s[0:1], 0")
    a("s_load_dwordx4 s[8:11], s[0:1], 8")
    a("s_load_dwordx2 s[6:7], s[0:1], 80")
    a("s_load_dwordx2 s[44:45], s[0:1], 32")
    a("v_and_b32 v1, 63, v0")
    a("v_lshrrev_b32 v2, 6, v0")
    a("v_readfirstlane_b32 s3, v2")
    a("s_lshr_b32 s28, s2, 5")
    a("s_and_b32 s29, s2, 31")
    a("s_lshr_b32 s30, s28, 1")
    a("s_and_b32 s31, s28, 1")
    a("s_lshl_b32 s30, s30, 3")
    a("s_lshl_b32 s31, s31, 1")
    a("s_add_u32 s30, s30, s31")
    a("s_bfe_u32 s31, s3, 0x10001")
    a("s_lshl_b32 s31, s31, 2")
    a("s_add_u32 s30, s30, s31")
    a("s_and_b32 s31, s3, 1")
    a("s_add_u32 s30, s30, s31")
    a("s_lshl_b32 s30, s30, 6")
    a("s_lshl_b32 s31, s29, 1")
    a("s_add_u32 s30, s30, s31")
    a("s_lshr_b32 s31, s3, 2")
    a("s_add_u32 s30, s30, s31")
    a("s_mul_i32 s43, s30, 192")
    a("s_mul_i32 s30, s30, 1152")
    a("v_lshlrev_b32 v3, 2, v1")
    a("s_waitcnt lgkmcnt(0)")
    for base, (lo, n) in {12: (4, 2359296), 16: (8, 1183744), 20: (10, 1183744), 24: (6, WS_END), 48: (44, 2048*9216)}.items():
        a(f"s_mov_b32 s{base}, s{lo}")
        a(f"s_mov_b32 s{base+1}, s{lo+1}")
        a(f"s_mov_b32 s{base+2}, {n}")
        a(f"s_mov_b32 s{base+3}, 0x00020000")
    XD = 10
    a("v_mov_b32 v14, 0")
    a("s_cmp_ge_u32 s3, 8")
    a("s_cbranch_scc1 K1_NOX")
    for j in range(4):
        a(f"buffer_load_dword v{XD+j}, v3, s[12:15], s30 offen offset:{256*j}")
    a("s_mov_b64 exec, 0xffffffff")
    a(f"buffer_load_dword v{XD+4}, v3, s[12:15], s30 offen offset:1024")
    a("s_mov_b64 exec, -1")
    a.label("K1_NOX")
    st(1)
    WR, WI = 20, 28
    a("s_and_b32 s32, s2, 15")
    a("s_lshr_b32 s33, s2, 4")
    a("s_lshl_b32 s34, s32, 1")
    a("s_lshl_b32 s35, s33, 7")
    a("s_add_u32 s34, s34, s35")
    a("s_mul_i32 s34, s34, 578")
    a("v_lshlrev_b32 v5, 1, v0")
    a("s_cmp_ge_u32 s3, 5")
    a("s_cbranch_scc1 K1_NOW")
    a("v_cmp_gt_u32 vcc, 289, v0")
    a("s_and_saveexec_b64 s[36:37], vcc")
    for dl in range(2):
        for r in range(4):
            off = (dl + 32 * r) * 578
            a(f"s_add_u32 s35, s34, {off}")
            a(f"buffer_load_ushort v{WR+dl*4+r}, v5, s[16:19], s35 offen")
            a(f"buffer_load_ushort v{WI+dl*4+r}, v5, s[20:23], s35 offen")
    a("s_mov_b64 exec, s[36:37]")
    a.label("K1_NOW")
    a("s_cmp_lt_u32 s3, 5")
    a("s_cbranch_scc1 K1_NOPF")
    a("s_and_b32 s46, s2, 7")
    a("s_mul_i32 s46, s46, 9")
    a("s_lshr_b32 s46, s46, 1")
    a("s_lshl_b32 s46, s46, 8")
    a("s_lshr_b32 s47, s2, 3")
    rows_per = PF_ROWS // 32
    a(f"s_mul_i32 s47, s47, {rows_per*9216}")
    a("s_add_u32 s46, s46, s47")
    a("v_subrev_u32 v6, 320, v0")
    a("v_mul_u32_u24 v7, 3277, v6")
    a("v_lshrrev_b32 v7, 16, v7")
    a("v_mul_u32_u24 v8, 20, v7")
    a("v_sub_u32 v8, v6, v8")
    a("v_mul_u32_u24 v7, 9216, v7")
    a("v_lshl_add_u32 v6, v8, 6, v7")
    for p in range((rows_per + 15) // 16):
        if (p + 1) * 16 > rows_per:
            a(f"v_cmp_gt_u32 vcc, {(rows_per - 16*p)*9216}, v6")
            a("s_and_saveexec_b64 s[36:37], vcc")
        a(f"buffer_load_dword v{100+p}, v6, s[48:51], s46 offen")
        if (p + 1) * 16 > rows_per:
            a("s_mov_b64 exec, s[36:37]")
        a(f"s_add_u32 s46, s46, {16*9216}")
    a.label("K1_NOPF")
    BC, BS = 40, 60
    TW = 80
    KF, QK, AN, T0, T1, T2 = 86, 87, 88, 89, 90, 91
    a("v_and_b32 v6, 15, v1")
    a("v_lshrrev_b32 v7, 4, v1")
    a("s_lshr_b32 s35, s3, 1")
    a("s_lshl_b32 s35, s35, 4")
    a("v_add_u32 v8, s35, v6")
    a(f"v_cvt_f32_u32 v{KF}, v8")
    a(f"v_mul_f32 v{KF}, {f2u(1/144.)}, v{KF}")
    a(f"v_cvt_f32_u32 v{QK}, v7")
    a(f"v_mul_f32 v{QK}, v{QK}, v{KF}")
    a(f"v_add_f32 v{QK}, v{QK}, v{QK}")
    sc = f2u(1 / 24.)
    for t5 in range(5):
        for e in range(8):
            if t5 < 4:
                a(f"v_fmamk_f32 v{AN}, v{KF}, {f2u(float(8*t5+(e>>2)+32*(e&3)))}, v{QK}")
            else:
                if e & 1: continue
                a(f"v_add_f32 v{AN}, v{QK}, v{QK}")
                a(f"v_fmamk_f32 v{AN}, v{KF}, {f2u(float(128+e//2))}, v{AN}")
            sincos(a, AN, T0, T1)
            if e & 1 == 0:
                a(f"v_mul_f32 v92, {sc}, v{T0}")
                a(f"v_mul_f32 v93, {sc}, v{T1}")
                if t5 == 4:
                    a(f"v_cvt_pk_f16_f32 v{BC+4*t5+e//2}, v92, 0")
                    a(f"v_cvt_pk_f16_f32 v{BS+4*t5+e//2}, v93, 0")
            else:
                a(f"v_mul_f32 v{T0}, {sc}, v{T0}")
                a(f"v_mul_f32 v{T1}, {sc}, v{T1}")
                a(f"v_cvt_pk_f16_f32 v{BC+4*t5+e//2}, v92, v{T0}")
                a(f"v_cvt_pk_f16_f32 v{BS+4*t5+e//2}, v93, v{T1}")
    for r in range(1, 4):
        a(f"v_mul_f32 v{AN}, {f2u(r/4.)}, v{KF}")
        sincos(a, AN, TW + 2 * (r - 1), TW + 2 * (r - 1) + 1)
    st(2)
    a("s_cmp_ge_u32 s2, 192")
    a("s_cbranch_scc1 K1_TABS")
    a("v_cmp_gt_u32 vcc, 288, v0")
    a("s_and_saveexec_b64 s[36:37], vcc")
    a("s_cbranch_execz K1_GDONE")
    a("s_mul_i32 s38, s2, 3")
    a("v_cmp_eq_u32 vcc, 0, v0")
    a(f"s_mov_b32 s40, 7456541")
    a(f"s_mov_b32 s41, 576")
    a("v_lshlrev_b32 v9, 2, v0")
    for i in range(3):
        a(f"s_add_u32 s39, s38, {i}")
        a(f"v_mul_u32_u24 v{T0}, s39, v0")
        a(f"v_mul_hi_u32 v{T1}, v{T0}, s40")
        a(f"v_mul_u32_u24 v{T1}, s41, v{T1}")
        a(f"v_sub_u32 v{T0}, v{T0}, v{T1}")
        a(f"v_cvt_f32_u32 v{AN}, v{T0}")
        a(f"v_mul_f32 v{AN}, {f2u(1/576.)}, v{AN}")
        a(f"v_cos_f32 v{T0}, v{AN}")
        a(f"v_sin_f32 v{T1}, v{AN}")
        a(f"v_mul_f32 v{T0}, {f2u(2/24.)}, v{T0}")
        a(f"v_mul_f32 v{T1}, {f2u(2/24.)}, v{T1}")
        a(f"v_cvt_pk_f16_f32 v{T0}, v{T0}, v{T1}")
        a("s_and_b32 s42, s39, 1")
        a("s_lshl_b32 s42, s42, 31")
        h24 = struct.unpack("<H", struct.pack("<e", 1 / 24.))[0]
        a(f"s_or_b32 s42, s42, {hex(h24 | (h24 << 16))}")
        a(f"v_mov_b32 v{T1}, s42")
        a(f"v_cndmask_b32 v{T0}, v{T0}, v{T1}, vcc")
        a(f"s_mul_i32 s42, s39, {UXP}")
        a(f"s_add_u32 s42, s42, {WS_UX}")
        a(f"buffer_store_dword v{T0}, v9, s[24:27], s42 offen")
    a.label("K1_GDONE")
    a("s_mov_b64 exec, s[36:37]")
    a("s_branch K1_TABDONE")
    a.label("K1_TABS")
    a("s_cmp_ge_u32 s3, 4")
    a("s_cbranch_scc1 K1_TABDONE")
    a("s_sub_u32 s38, s2, 192")
    a("s_lshl_b32 s38, s38, 8")
    a("v_add_u32 v9, s38, v0")
    I = 9
    L5, H, X0, X1, X2, X3 = 92, 93, 94, 95, 96, 97
    a(f"v_and_b32 v{L5}, 31, v1")
    a(f"v_lshrrev_b32 v{H}, 5, v1")
    a("s_cmp_ge_u32 s2, 200")
    a("s_cbranch_scc1 K1_TF64")
    a(f"v_and_b32 v{X0}, 3, v{I}")
    a(f"v_bfe_u32 v{X1}, v{I}, 2, 6")
    a(f"v_bfe_u32 v{X2}, v{I}, 8, 2")
    a(f"v_lshrrev_b32 v{X3}, 10, v{I}")
    a(f"v_lshlrev_b32 v{T0}, 3, v{X2}")
    a(f"v_lshrrev_b32 v{T1}, 1, v{X0}")
    a(f"v_lshl_add_u32 v{T0}, v{T1}, 2, v{T0}")
    a(f"v_lshrrev_b32 v{T1}, 5, v{X1}")
    a(f"v_lshl_add_u32 v{T0}, v{T1}, 1, v{T0}")
    a(f"v_and_b32 v{T1}, 1, v{X0}")
    a(f"v_add_u32 v{T0}, v{T0}, v{T1}")
    a(f"v_bfe_u32 v{T1}, v{X1}, 1, 4")
    a(f"v_lshl_add_u32 v{T1}, v{X3}, 4, v{T1}")
    a(f"v_mul_u32_u24 v{T0}, v{T0}, v{T1}")
    a(f"v_and_b32 v{T0}, 31, v{T0}")
    a(f"v_cvt_f32_u32 v{AN}, v{T0}")
    a(f"v_mul_f32 v{AN}, {f2u(1/32.)}, v{AN}")
    a(f"v_cos_f32 v{T0}, v{AN}")
    a(f"v_sin_f32 v{T1}, v{AN}")
    s32 = f2u(32 ** -0.5)
    a(f"v_mul_f32 v{T0}, {s32}, v{T0}")
    a(f"v_mul_f32 v{T1}, {s32}, v{T1}")
    a(f"v_cvt_pk_f16_f32 v{X2}, v{T0}, v{T1}")
    a(f"v_sub_f32 v{T1}, 0, v{T1}")
    a(f"v_cvt_pk_f16_f32 v{X3}, v{T1}, v{T0}")
    a(f"v_and_b32 v{X1}, 1, v{X1}")
    a(f"v_cmp_eq_u32 vcc, 1, v{X1}")
    a(f"v_cndmask_b32 v{X2}, v{X2}, v{X3}, vcc")
    a(f"v_lshlrev_b32 v{T0}, 2, v{I}")
    a(f"s_mov_b32 s38, {WS_TB}")
    a(f"buffer_store_dword v{X2}, v{T0}, s[24:27], s38 offen")
    a("s_branch K1_TABDONE")
    a.label("K1_TF64")
    a("s_cmp_ge_u32 s2, 216")
    a("s_cbranch_scc1 K1_TTW1")
    a(f"v_subrev_u32 v{I}, 2048, v{I}")
    a(f"v_and_b32 v{X0}, 3, v{I}")
    a(f"v_bfe_u32 v{X1}, v{I}, 2, 6")
    a(f"v_bfe_u32 v{X2}, v{I}, 8, 2")
    a(f"v_bfe_u32 v{X3}, v{I}, 10, 1")
    a(f"v_and_b32 v{T0}, 31, v{X1}")
    a(f"v_lshl_add_u32 v{T0}, v{X3}, 5, v{T0}")
    a(f"v_lshlrev_b32 v{T1}, 4, v{X2}")
    a(f"v_lshrrev_b32 v{T2}, 1, v{X0}")
    a(f"v_lshl_add_u32 v{T1}, v{T2}, 3, v{T1}")
    a(f"v_lshrrev_b32 v{T2}, 5, v{X1}")
    a(f"v_lshl_add_u32 v{T1}, v{T2}, 2, v{T1}")
    a(f"v_and_b32 v{T2}, 1, v{X0}")
    a(f"v_lshl_add_u32 v{T1}, v{T2}, 1, v{T1}")
    a(f"v_mul_u32_u24 v{T1}, v{T1}, v{T0}")
    a(f"v_add_u32 v{T2}, v{T1}, v{T0}")
    a(f"v_and_b32 v{T1}, 63, v{T1}")
    a(f"v_and_b32 v{T2}, 63, v{T2}")
    a(f"v_cvt_f32_u32 v{T1}, v{T1}")
    a(f"v_cvt_f32_u32 v{T2}, v{T2}")
    a(f"v_mul_f32 v{T1}, {f2u(1/64.)}, v{T1}")
    a(f"v_mul_f32 v{T2}, {f2u(1/64.)}, v{T2}")
    a(f"v_lshrrev_b32 v{X3}, 11, v{I}")
    a(f"v_cvt_f32_u32 v{X3}, v{X3}")
    a(f"v_fmamk_f32 v{T1}, v{X3}, {f2u(-0.25)}, v{T1}")
    a(f"v_fmamk_f32 v{T2}, v{X3}, {f2u(-0.25)}, v{T2}")
    a(f"v_cos_f32 v{T1}, v{T1}")
    a(f"v_cos_f32 v{T2}, v{T2}")
    a(f"v_mul_f32 v{T1}, {f2u(0.125)}, v{T1}")
    a(f"v_mul_f32 v{T2}, {f2u(0.125)}, v{T2}")
    a(f"v_cvt_pk_f16_f32 v{T1}, v{T1}, v{T2}")
    a(f"v_lshlrev_b32 v{T0}, 2, v{I}")
    a(f"s_mov_b32 s38, {WS_TB+0x2000}")
    a(f"buffer_store_dword v{T1}, v{T0}, s[24:27], s38 offen")
    a("s_branch K1_TABDONE")
    a.label("K1_TTW1")
    a("s_cmp_ge_u32 s2, 224")
    a("s_cbranch_scc1 K1_TTW2")
    a(f"v_subrev_u32 v{I}, 6144, v{I}")
    a(f"v_bfe_u32 v{X0}, v{I}, 6, 3")
    a(f"v_bfe_u32 v{X1}, v{I}, 9, 1")
    a(f"v_bfe_u32 v{X2}, v{I}, 10, 1")
    a(f"v_bfe_u32 v{T0}, v1, 1, 4")
    a(f"v_lshl_add_u32 v{T0}, v{X1}, 4, v{T0}")
    a(f"v_lshlrev_b32 v{T1}, 5, v{X2}")
    a(f"v_lshrrev_b32 v{T2}, 1, v{X0}")
    a(f"v_lshl_add_u32 v{T1}, v{T2}, 3, v{T1}")
    a(f"v_lshl_add_u32 v{T1}, v{H}, 2, v{T1}")
    a(f"v_and_b32 v{T2}, 1, v{X0}")
    a(f"v_lshl_add_u32 v{T1}, v{T2}, 1, v{T1}")
    a(f"v_mul_u32_u24 v{T1}, v{T1}, v{T0}")
    a(f"v_add_u32 v{T2}, v{T1}, v{T0}")
    a(f"v_cvt_f32_u32 v{T1}, v{T1}")
    a(f"v_cvt_f32_u32 v{T2}, v{T2}")
    a(f"v_mul_f32 v{T1}, {f2u(1/2048.)}, v{T1}")
    a(f"v_mul_f32 v{T2}, {f2u(1/2048.)}, v{T2}")
    a(f"v_cos_f32 v100, v{T1}")
    a(f"v_sin_f32 v101, v{T1}")
    a(f"v_cos_f32 v102, v{T2}")
    a(f"v_sin_f32 v103, v{T2}")
    a(f"v_lshlrev_b32 v{X0}, 31, v1")
    a(f"v_xor_b32 v101, v101, v{X0}")
    a(f"v_xor_b32 v103, v103, v{X0}")
    a(f"v_lshlrev_b32 v{T0}, 4, v{I}")
    a(f"s_mov_b32 s38, {WS_TB+0x6000}")
    a(f"buffer_store_dwordx4 v[100:103], v{T0}, s[24:27], s38 offen")
    a("s_branch K1_TABDONE")
    a.label("K1_TTW2")
    a("s_cmp_ge_u32 s2, 228")
    a("s_cbranch_scc1 K1_TABDONE")
    a(f"v_subrev_u32 v{I}, 8192, v{I}")
    a(f"v_bfe_u32 v{X0}, v{I}, 6, 2")
    a(f"v_bfe_u32 v{X1}, v{I}, 8, 1")
    a(f"v_bfe_u32 v{X2}, v{I}, 9, 1")
    a(f"v_lshl_add_u32 v{T0}, v{X1}, 5, v{L5}")
    a(f"v_lshlrev_b32 v{T1}, 4, v{X2}")
    a(f"v_lshl_add_u32 v{T1}, v{X0}, 2, v{T1}")
    a(f"v_lshl_add_u32 v{T1}, v{H}, 1, v{T1}")
    a(f"v_mul_u32_u24 v{T1}, v{T1}, v{T0}")
    a(f"v_add_u32 v{T2}, v{T1}, v{T0}")
    a(f"v_cvt_f32_u32 v{T1}, v{T1}")
    a(f"v_cvt_f32_u32 v{T2}, v{T2}")
    a(f"v_mul_f32 v{T1}, {f2u(1/2048.)}, v{T1}")
    a(f"v_mul_f32 v{T2}, {f2u(1/2048.)}, v{T2}")
    a(f"v_cos_f32 v100, v{T1}")
    a(f"v_sin_f32 v101, v{T1}")
    a(f"v_cos_f32 v102, v{T2}")
    a(f"v_sin_f32 v103, v{T2}")
    a(f"v_lshlrev_b32 v{T0}, 4, v{I}")
    a(f"s_mov_b32 s38, {WS_TB+0xE000}")
    a(f"buffer_store_dwordx4 v[100:103], v{T0}, s[24:27], s38 offen")
    a.label("K1_TABDONE")
    st(3)
    a("s_cmp_ge_u32 s3, 8")
    a("s_cbranch_scc1 K1_NOLN")
    npf = (PF_ROWS // 32 + 15) // 16
    a("s_cmp_ge_u32 s3, 5")
    a("s_cbranch_scc1 K1_W57")
    a("s_waitcnt vmcnt(0)")
    a("v_cmp_gt_u32 vcc, 289, v0")
    a("s_and_saveexec_b64 s[36:37], vcc")
    for i in range(8):
        a(f"v_lshlrev_b32 v{WR+i}, 16, v{WR+i}")
        a(f"v_lshlrev_b32 v{WI+i}, 16, v{WI+i}")
    for i in range(8):
        a(f"v_cvt_pk_f16_f32 v{WR+i}, v{WR+i}, v{WI+i}")
    a("s_lshr_b32 s38, s32, 3")
    a("s_lshl_b32 s38, s38, 4")
    a("s_add_u32 s38, s38, s33")
    a("s_lshl_b32 s38, s38, 8")
    a("s_and_b32 s39, s32, 7")
    a("s_lshl_b32 s39, s39, 5")
    a("s_add_u32 s38, s38, s39")
    a(f"s_add_u32 s38, s38, {WS_WT}")
    a("v_lshlrev_b32 v5, 13, v0")
    a(f"buffer_store_dwordx4 v[{WR}:{WR+3}], v5, s[24:27], s38 offen")
    a(f"buffer_store_dwordx4 v[{WR+4}:{WR+7}], v5, s[24:27], s38 offen offset:16")
    a("s_mov_b64 exec, s[36:37]")
    a("s_branch K1_LN")
    a.label("K1_W57")
    a(f"s_waitcnt vmcnt({npf})")
    a.label("K1_LN")
    st(4)
    PITCH = 336
    XN, HH, XF, TMP = 110, 116, 122, 132
    a("v_cmp_gt_u32 vcc, 32, v1")
    a(f"v_cndmask_b32 v{TMP+6}, 0, 1.0, vcc")
    a(f"v_mov_b32 v{TMP+7}, v{TMP+6}")
    layernorm(a, XD, XN, XF, TMP)
    for j in range(5):
        a(f"v_lshlrev_b32 v{XF+2*j}, 16, v{XN+j}")
        a(f"v_and_b32 v{XF+2*j+1}, 0xffff0000, v{XN+j}")
    PK = 152
    for rs in range(2):
        for jj in range(2):
            a(f"v_cvt_pk_f16_f32 v{PK+4*rs+jj}, v{XF+2*(2*jj)+rs}, v{XF+2*(2*jj+1)+rs}")
        a(f"v_cvt_pk_f16_f32 v{PK+4*rs+2}, v{XF+8+rs}, 0")
    a("s_lshl_b32 s38, s3, 2")
    a("v_and_b32 v4, 1, v1")
    a("v_lshlrev_b32 v4, 1, v4")
    a("v_add_u32 v4, s38, v4")
    a(f"v_mul_u32_u24 v4, {PITCH}, v4")
    a("v_lshrrev_b32 v5, 1, v1")
    a("v_lshl_add_u32 v6, v5, 2, v4")
    a("v_lshl_add_u32 v4, v5, 3, v4")
    for rs in range(2):
        a(f"ds_write_b64 v4, v[{PK+4*rs}:{PK+4*rs+1}] offset:{PITCH*rs}")
    a("s_mov_b64 exec, 0xffffffff")
    for rs in range(2):
        a(f"ds_write_b32 v6, v{PK+4*rs+2} offset:{PITCH*rs+256}")
    a("s_mov_b64 exec, -1")
    a("s_waitcnt lgkmcnt(0)")
    a("s_barrier")
    layernorm(a, XN, HH, XF, TMP)
    for j in range(5):
        a(f"v_add_u32 v4, {64*j}, v1")
        a("v_mul_u32_u24 v5, 1366, v4")
        a("v_lshrrev_b32 v5, 16, v5")
        a("v_mul_u32_u24 v6, 48, v5")
        a("v_sub_u32 v6, v4, v6")
        a("v_mul_u32_u24 v5, 393216, v5")
        a("v_lshl_add_u32 v5, v6, 2, v5")
        if j == 4: a("s_mov_b64 exec, 0xffffffff")
        a(f"buffer_store_dword v{HH+j}, v5, s[24:27], s43 offen")
        if j == 4: a("s_mov_b64 exec, -1")
    a("s_branch K1_MF")
    a.label("K1_NOLN")
    a("s_barrier")
    a.label("K1_MF")
    st(5)
    AF = 100
    AF = 148
    AC = 140
    a("v_and_b32 v6, 15, v1")
    a("v_lshrrev_b32 v7, 4, v1")
    a("s_and_b32 s38, s3, 1")
    a("s_lshl_b32 s39, s38, 4")
    a("v_add_u32 v4, s39, v6")
    a(f"v_mul_u32_u24 v4, {PITCH}, v4")
    a("v_lshl_add_u32 v4, v7, 4, v4")
    for t5 in range(5):
        a(f"ds_read_b128 v[{AF+4*t5}:{AF+4*t5+3}], v4 offset:{64*t5}")
    a("s_lshr_b32 s35, s3, 1")
    a("s_lshl_b32 s35, s35, 4")
    a("v_add_u32 v8, s35, v6")
    a("v_lshlrev_b32 v9, 13, v8")
    a("v_lshl_add_u32 v10, v7, 2, v9")
    a("v_lshlrev_b32 v11, 2, v7")
    a("v_sub_u32 v11, v11, v9")
    a(f"v_add_u32 v11, {288*8192}, v11")
    a("s_lshl_b32 s40, s28, 10")
    a("s_lshl_b32 s39, s29, 5")
    a("s_add_u32 s40, s40, s39")
    a("s_lshl_b32 s38, s38, 4")
    a("s_add_u32 s38, s38, s40")
    a(f"s_add_u32 s38, s38, {WS_Z}")
    a(f"s_add_u32 s39, s38, {144*8192}")
    a(f"s_sub_u32 s40, s38, {144*8192}")
    a("s_waitcnt lgkmcnt(0)")
    for t5 in range(5):
        af = AF + 4 * t5
        src = "0" if t5 == 0 else None
        a(f"v_mfma_f32_16x16x32_f16 v[{AC}:{AC+3}], v[{af}:{af+3}], v[{BC+4*t5}:{BC+4*t5+3}], " + (src or f"v[{AC}:{AC+3}]"))
        a(f"v_mfma_f32_16x16x32_f16 v[{AC+4}:{AC+7}], v[{af}:{af+3}], v[{BS+4*t5}:{BS+4*t5+3}], " + (src or f"v[{AC+4}:{AC+7}]"))
    a("v_cmp_gt_u32 vcc, 73, v8")
    a("s_and_saveexec_b64 s[36:37], vcc")
    P = 100
    C = AC; S = C + 4
    for r in range(1, 4):
        cr, sr = TW + 2 * (r - 1), TW + 2 * (r - 1) + 1
        a(f"v_mul_f32 v{P+2*r}, v{C+r}, v{cr}")
        a(f"v_fma_f32 v{P+2*r}, -v{S+r}, v{sr}, v{P+2*r}")
        a(f"v_mul_f32 v{P+2*r+1}, v{C+r}, v{sr}")
        a(f"v_fmac_f32 v{P+2*r+1}, v{S+r}, v{cr}")
    Ap, Aq, Bp, Bq, Cp, Cq, Dp, Dq = range(P + 8, P + 16)
    a(f"v_add_f32 v{Ap}, v{C}, v{P+4}")
    a(f"v_add_f32 v{Aq}, v{S}, v{P+5}")
    a(f"v_sub_f32 v{Bp}, v{C}, v{P+4}")
    a(f"v_sub_f32 v{Bq}, v{S}, v{P+5}")
    a(f"v_add_f32 v{Cp}, v{P+2}, v{P+6}")
    a(f"v_add_f32 v{Cq}, v{P+3}, v{P+7}")
    a(f"v_sub_f32 v{Dp}, v{P+2}, v{P+6}")
    a(f"v_sub_f32 v{Dq}, v{P+3}, v{P+7}")
    o = P + 16
    a(f"v_add_f32 v{P}, v{Bp}, v{Dq}")
    a(f"v_sub_f32 v{P+1}, v{Bq}, v{Dp}")
    a(f"v_cvt_pk_f16_f32 v{o+3}, v{P}, v{P+1}")
    a(f"v_sub_f32 v{P+2}, v{Ap}, v{Cp}")
    a(f"v_sub_f32 v{P+3}, v{Aq}, v{Cq}")
    a(f"buffer_store_dword v{o+3}, v11, s[24:27], s40 offen")
    a(f"v_cvt_pk_f16_f32 v{o+1}, v{P+2}, v{P+3}")
    a(f"v_sub_f32 v{P}, v{Bp}, v{Dq}")
    a(f"v_add_f32 v{P+1}, v{Bq}, v{Dp}")
    a(f"buffer_store_dword v{o+1}, v11, s[24:27], s38 offen")
    a(f"v_cvt_pk_f16_f32 v{o+2}, v{P}, -v{P+1}")
    a(f"v_add_f32 v{P+2}, v{Ap}, v{Cp}")
    a(f"v_add_f32 v{P+3}, v{Aq}, v{Cq}")
    a(f"buffer_store_dword v{o+2}, v10, s[24:27], s39 offen")
    a(f"v_cvt_pk_f16_f32 v{o}, v{P+2}, -v{P+3}")
    a(f"buffer_store_dword v{o}, v10, s[24:27], s38 offen")
    st(6)
    if stamps:
        a('s_waitcnt vmcnt(0) lgkmcnt(0)')
        a('s_memtime s[74:75]')
        a('s_waitcnt lgkmcnt(0)')
        a('s_mov_b64 exec, 1')
        a('s_lshl_b32 s38, s2, 4')
        a('s_add_u32 s38, s38, s3')
        a('s_lshl_b32 s38, s38, 6')
        a('s_add_u32 s38, s38, 0x1000000')
        a('s_mov_b32 s26, 0x2000000')
        a('v_mov_b32 v1, 0')
        for i in range(8):
            a(f's_sub_u32 s39, s{60+2*i}, s60')
            a(f'v_mov_b32 v2, s39')
            a(f'buffer_store_dword v2, v1, s[24:27], s38 offen offset:{4*i}')
    a.label("K1_END")
    a("s_endpgm")
    return insert_hazard_nops(a.lines), 168
```

```python
from asmlib import *
from k1 import PF_ROWS, f2u, WS_H, WS_Z, WS_WT, WS_UX, WS_YT, WS_TB, WS_END, UXP
R = 11
STG = 14336
LDS = R * STG
NST = 64

STAMPS = [False]
def st(a, i):
    if STAMPS[0]: a(f's_memrealtime s[{70+2*i}:{71+2*i}]')
def dump(a, n, wreg):
    if STAMPS[0]:
        a('s_waitcnt vmcnt(0) lgkmcnt(0)')
        a('s_mov_b64 exec, 1')
        a('s_lshl_b32 s56, s2, 3')
        a(f's_add_u32 s56, s56, {wreg}')
        a('s_lshl_b32 s56, s56, 6')
        a('s_add_u32 s56, s56, 0x1100000')
        a('s_mov_b32 s26, 0x2000000')
        a('v_mov_b32 v1, 0')
        for i in range(n):
            a(f'v_mov_b32 v2, s{70+2*i}')
            a(f'buffer_store_dword v2, v1, s[24:27], s56 offen offset:{4*i}')
def gemm1(a):
    a("s_and_b32 s28, s2, 7")
    a("s_lshr_b32 s29, s2, 3")
    a("s_mul_i32 s28, s28, 27")
    a("s_add_u32 s28, s28, s29")
    a("s_mul_i32 s29, s28, 10923")
    a("s_lshr_b32 s29, s29, 16")
    a("s_mul_i32 s30, s29, 6")
    a("s_sub_u32 s30, s28, s30")
    a("s_lshl_b32 s31, s29, 8")
    a("s_mul_i32 s32, s30, 192")
    a("s_cmp_lt_u32 s3, 4")
    a("s_cbranch_scc1 G1_CONS")
    a("s_sub_u32 s3, s3, 4")
    VW, VH = 2, 4
    a("v_lshrrev_b32 v10, 4, v1")
    a("v_and_b32 v11, 15, v1")
    a("v_lshlrev_b32 v12, 2, v10")
    a("v_xor_b32 v11, v11, v12")
    a(f"v_mul_u32_u24 v{VW}, 9216, v10")
    a(f"v_lshl_add_u32 v{VW}, v11, 4, v{VW}")
    a(f"v_add_u32 v{VW+1}, {4*9216-1024}, v{VW}")
    a(f"v_lshlrev_b32 v{VH}, 4, v1")
    a(f"v_mov_b32 v{VH+1}, v{VH}")
    a(f"s_mul_i32 s33, s3, {8*9216}")
    a("s_add_u32 s33, s33, s31")
    a(f"s_mul_i32 s34, s3, 1536")
    a(f"s_mul_i32 s32, s30, 393216")
    a("s_add_u32 s34, s34, s32")
    a("s_lshl_b32 s35, s3, 11")
    a("s_mul_i32 s36, s3, 1536")
    a("s_add_u32 s36, s36, 8192")
    a("s_mov_b32 s37, 0")
    def dma():
        a("s_add_u32 s38, s37, s35")
        a("s_mov_b32 m0, s38")
        a("s_add_u32 s38, s37, s36")
        for i in range(2):
            a(f"buffer_load_dwordx4 v{VW+i}, s[12:15], s33 offen offset:{1024*i} lds")
        a("s_mov_b32 m0, s38")
        a(f"s_add_u32 s33, s33, {32*9216}")
        a(f"buffer_load_dwordx4 v{VH}, s[16:19], s34 offen lds")
        a("s_mov_b64 exec, 0xffffffff")
        a(f"buffer_load_dwordx4 v{VH+1}, s[16:19], s34 offen offset:1024 lds")
        a("s_mov_b64 exec, -1")
        a(f"s_add_u32 s34, s34, {32*192}")
        a(f"s_add_u32 s37, s37, {STG}")
        a(f"s_cmp_ge_u32 s37, {LDS}")
        a("s_cselect_b32 s37, 0, s37")
    for i in range(R - 1): dma()
    a(f"s_waitcnt vmcnt({4*(R-3)})")
    a("s_barrier")
    a("s_mov_b32 s44, 0")
    a.label("G1_LLOOP")
    a(f"s_waitcnt vmcnt({4*(R-4)})")
    a("s_barrier")
    dma()
    a("s_add_u32 s44, s44, 1")
    a(f"s_cmp_lt_u32 s44, {NST-(R-1)}")
    a("s_cbranch_scc1 G1_LLOOP")
    for t in range(R - 1):
        a(f"s_waitcnt vmcnt({max(0, 4*(R-4-t))})")
        a("s_barrier")
    a("s_waitcnt vmcnt(0)")
    a("s_barrier")
    a("s_endpgm")
    a.label("G1_CONS")
    VA0, VA1, VB, CA0, CA1, CB = 2, 3, 4, 5, 6, 7
    a("s_and_b32 s40, s3, 1")
    a("s_lshr_b32 s41, s3, 1")
    a("v_lshrrev_b32 v10, 5, v1")
    a("v_bfe_u32 v11, v1, 2, 2")
    a("v_lshl_add_u32 v10, v10, 3, v11")
    a("s_lshl_b32 s42, s40, 4")
    a("v_add_u32 v10, s42, v10")
    a("v_bfe_u32 v12, v1, 4, 1")
    a("v_bfe_u32 v13, v1, 1, 1")
    a("v_lshl_add_u32 v12, v12, 1, v13")
    a("v_and_b32 v13, 1, v1")
    a("v_lshlrev_b32 v13, 3, v13")
    a("v_lshl_add_u32 v13, v12, 4, v13")
    a("s_lshl_b32 s42, s41, 1")
    a("v_xor_b32 v14, s42, v11")
    a(f"v_lshlrev_b32 v{VA0}, 8, v10")
    a(f"v_lshl_add_u32 v{VA0}, v14, 6, v{VA0}")
    a(f"v_add_u32 v{VA0}, v{VA0}, v13")
    a(f"v_xor_b32 v{VA1}, 64, v{VA0}")
    a(f"v_mul_u32_u24 v{VB}, 192, v10")
    a(f"v_add_u32 v{VB}, v{VB}, v13")
    a(f"v_add_u32 v{VB}, 8192, v{VB}")
    ACC = 16
    FR = [112, 132, 152]
    def read_list(setn):
        f = FR[setn]; L = []
        for mi, ca in enumerate((CA0, CA1)):
            L.append(f"ds_read_b64_tr_b16 v[{f+4*mi}:{f+4*mi+1}], v{ca}")
            L.append(f"ds_read_b64_tr_b16 v[{f+4*mi+2}:{f+4*mi+3}], v{ca} offset:1024")
        for ni in range(3):
            L.append(f"ds_read_b64_tr_b16 v[{f+8+4*ni}:{f+8+4*ni+1}], v{CB} offset:{ni*64}")
            L.append(f"ds_read_b64_tr_b16 v[{f+8+4*ni+2}:{f+8+4*ni+3}], v{CB} offset:{ni*64+768}")
        return L
    def mfma_list(setn):
        f = FR[setn]; L = []
        for mi in range(2):
            for ni in range(3):
                c = ACC + (mi * 3 + ni) * 16
                L.append(f"v_mfma_f32_32x32x16_bf16 v[{c}:{c+15}], v[{f+4*mi}:{f+4*mi+3}], v[{f+8+4*ni}:{f+8+4*ni+3}], v[{c}:{c+15}]")
        return L
    def addrs():
        a(f"v_add_u32 v{CA0}, s43, v{VA0}")
        a(f"v_add_u32 v{CA1}, s43, v{VA1}")
        a(f"v_add_u32 v{CB}, s43, v{VB}")
    if PF_ROWS < 2048:
        a("s_and_b32 s46, s2, 7")
        a("s_mul_i32 s46, s46, 9")
        a("s_lshr_b32 s46, s46, 1")
        a("s_lshl_b32 s46, s46, 8")
        a("s_lshr_b32 s47, s2, 3")
        RP = (2048 - PF_ROWS + 26) // 27
        a(f"s_mul_i32 s47, s47, {RP*9216}")
        a("s_add_u32 s46, s46, s47")
        a(f"s_add_u32 s46, s46, {PF_ROWS*9216}")
        a("v_lshrrev_b32 v10, 3, v0")
        a("v_mul_u32_u24 v10, 9216, v10")
        a("v_and_b32 v11, 7, v0")
        a("v_lshl_add_u32 v10, v11, 6, v10")
        for p in range((RP + 31) // 32):
            for i in range(3):
                a(f"buffer_load_dword v{200+i}, v10, s[12:15], s46 offen offset:{512*i}")
            a(f"s_add_u32 s46, s46, {32*9216}")
    for i in range(96): a(f"v_mov_b32 v{ACC+i}, 0")
    def adv():
        a(f"s_add_u32 s43, s43, {STG}")
        a(f"s_cmp_ge_u32 s43, {LDS}")
        a("s_cselect_b32 s43, 0, s43")
        addrs()
    a("s_barrier")
    a("s_mov_b32 s43, 0")
    addrs()
    for x in read_list(0): a(x)
    adv()
    for x in read_list(1): a(x)
    st(a, 1)
    def it(par):
        adv()
        a("s_waitcnt lgkmcnt(10)")
        a("s_barrier")
        rl = read_list((par + 2) % 3); ml = mfma_list(par); ri = 0
        for i, mline in enumerate(ml):
            a(mline)
            want = min(len(rl), (i + 1) * 2)
            while ri < want:
                a(rl[ri]); ri += 1
    a("s_mov_b32 s44, 0")
    a.label("G1_LOOP")
    it(0); it(1); it(2)
    a("s_add_u32 s44, s44, 1")
    a(f"s_cmp_lt_u32 s44, {NST//3}")
    a("s_cbranch_scc1 G1_LOOP")
    it(0)
    a("s_waitcnt lgkmcnt(0)")
    a("s_barrier")
    st(a, 2)
    a("v_lshlrev_b32 v2, 4, v1")
    a("s_mul_i32 s45, s3, 12288")
    a("v_add_u32 v3, s45, v2")
    a("s_xor_b32 s46, s3, 1")
    a("s_mul_i32 s46, s46, 12288")
    a("v_add_u32 v4, s46, v2")
    a("v_lshrrev_b32 v5, 5, v1")
    a("v_lshlrev_b32 v5, 3, v5")
    a("s_lshl_b32 s45, s3, 6")
    a("s_add_u32 s45, s45, s31")
    B1R = 176
    for g in range(4):
        a(f"buffer_load_dwordx2 v[{B1R+2*g}:{B1R+2*g+1}], v5, s[20:23], s45 offen offset:{16*g}")
    for kh in range(2):
        a(f"s_cmp_lg_u32 s40, {kh}")
        a(f"s_cbranch_scc1 G1_SKX{kh}")
        snd = ACC + (1 - kh) * 48
        for i in range(12):
            a(f"ds_write_b128 v3, v[{snd+4*i}:{snd+4*i+3}] offset:{1024*i}")
        a("s_waitcnt lgkmcnt(0)")
        a("s_barrier")
        for i in range(12):
            a(f"ds_read_b128 v[{snd+4*i}:{snd+4*i+3}], v4 offset:{1024*i}")
        a("s_waitcnt lgkmcnt(0)")
        keep = ACC + kh * 48
        for i in range(24):
            a(f"v_pk_add_f32 v[{ACC+2*i}:{ACC+2*i+1}], v[{keep+2*i}:{keep+2*i+1}], v[{snd+2*i}:{snd+2*i+1}]")
        a.label(f"G1_SKX{kh}")
    a("s_waitcnt vmcnt(0)")
    BF = 64
    for g in range(4):
        a(f"v_lshlrev_b32 v{BF+4*g}, 16, v{B1R+2*g}")
        a(f"v_and_b32 v{BF+4*g+1}, 0xffff0000, v{B1R+2*g}")
        a(f"v_lshlrev_b32 v{BF+4*g+2}, 16, v{B1R+2*g+1}")
        a(f"v_and_b32 v{BF+4*g+3}, 0xffff0000, v{B1R+2*g+1}")
    c1 = f2u(0.044715); c2 = f2u(-2 * 0.7978845608028654 * 1.4426950408889634)
    a(f"s_mov_b32 s47, {c1}")
    a(f"s_mov_b32 s48, {c2}")
    a("v_and_b32 v6, 31, v1")
    a(f"v_mul_u32_u24 v6, {UXP}, v6")
    a("v_lshrrev_b32 v7, 5, v1")
    a("v_lshl_add_u32 v6, v7, 4, v6")
    a(f"s_mul_i32 s46, s30, {96*UXP}")
    a("s_add_u32 s46, s46, s45")
    a(f"s_add_u32 s46, s46, {WS_UX+1152}")
    T = 80; O = 100
    n = 0
    for ni in range(3):
        for gam in range(2):
            o = O + 4 * n; n += 1
            for gg in range(2):
                g = 2 * gam + gg
                c = ACC + ni * 16 + 4 * g
                a(f"v_cvt_pk_bf16_f32 v{T}, v{c}, v{c+1}")
                a(f"v_cvt_pk_bf16_f32 v{T+1}, v{c+2}, v{c+3}")
                a(f"v_lshlrev_b32 v{c}, 16, v{T}")
                a(f"v_and_b32 v{c+1}, 0xffff0000, v{T}")
                a(f"v_lshlrev_b32 v{c+2}, 16, v{T+1}")
                a(f"v_and_b32 v{c+3}, 0xffff0000, v{T+1}")
                a(f"v_pk_add_f32 v[{c}:{c+1}], v[{c}:{c+1}], v[{BF+4*g}:{BF+4*g+1}]")
                a(f"v_pk_add_f32 v[{c+2}:{c+3}], v[{c+2}:{c+3}], v[{BF+4*g+2}:{BF+4*g+3}]")
                a(f"v_cvt_pk_bf16_f32 v{T}, v{c}, v{c+1}")
                a(f"v_cvt_pk_bf16_f32 v{T+1}, v{c+2}, v{c+3}")
                a(f"v_lshlrev_b32 v{c}, 16, v{T}")
                a(f"v_and_b32 v{c+1}, 0xffff0000, v{T}")
                a(f"v_lshlrev_b32 v{c+2}, 16, v{T+1}")
                a(f"v_and_b32 v{c+3}, 0xffff0000, v{T+1}")
                for r in range(4): a(f"v_mul_f32 v{T+2+r}, v{c+r}, v{c+r}")
                for r in range(4): a(f"v_fma_f32 v{T+2+r}, v{T+2+r}, s47, 1.0")
                for r in range(4): a(f"v_mul_f32 v{T+2+r}, v{T+2+r}, v{c+r}")
                for r in range(4): a(f"v_mul_f32 v{T+2+r}, s48, v{T+2+r}")
                for r in range(4): a(f"v_exp_f32 v{T+2+r}, v{T+2+r}")
                for r in range(4): a(f"v_add_f32 v{T+2+r}, 1.0, v{T+2+r}")
                for r in range(4): a(f"v_rcp_f32 v{T+2+r}, v{T+2+r}")
                for r in range(4): a(f"v_mul_f32 v{c+r}, v{c+r}, v{T+2+r}")
                a(f"v_cvt_pk_bf16_f32 v{o+2*gg}, v{c}, v{c+1}")
                a(f"v_cvt_pk_bf16_f32 v{o+2*gg+1}, v{c+2}, v{c+3}")
            a(f"v_permlane32_swap_b32 v{o}, v{o+2}")
            a(f"v_permlane32_swap_b32 v{o+1}, v{o+3}")
            a(f"s_add_u32 s49, s46, {ni*32*UXP}")
            a(f"buffer_store_dwordx4 v[{o}:{o+3}], v6, s[24:27], s49 offen offset:{32*gam}")
    st(a, 3)
    dump(a, 4, "s3")
    a("s_endpgm")

def fft(a):
    B1F, F64C, F64S, XIN, ACC, YP, TMP = 16, 48, 80, 112, 144, 208, 240
    LW = 49152
    a("s_sub_u32 s28, s2, 216")
    a("s_lshl_b32 s28, s28, 3")
    a("s_add_u32 s28, s28, s3")
    a("s_min_u32 s29, s28, 288")
    a("v_lshlrev_b32 v2, 4, v1")
    a("s_mul_i32 s30, s3, 6144")
    for i in range(6):
        a(f"s_add_u32 s31, s30, {1024*i}")
        a("s_mov_b32 m0, s31")
        a(f"s_add_u32 s32, s31, {WS_TB+0x6000}")
        a("buffer_load_dwordx4 v2, s[24:27], s32 offen lds")
    a("s_lshl_b32 s33, s29, 13")
    a("s_lshl_b32 s34, s3, 13")
    a(f"s_add_u32 s34, s34, {LW}")
    for i in range(8):
        a(f"s_add_u32 s31, s34, {1024*i}")
        a("s_mov_b32 m0, s31")
        a(f"s_add_u32 s32, s33, {WS_WT+1024*i}")
        a("buffer_load_dwordx4 v2, s[24:27], s32 offen lds")
    a("v_lshrrev_b32 v3, 5, v1")
    a("v_lshlrev_b32 v3, 10, v3")
    a("v_and_b32 v4, 31, v1")
    a("v_lshl_add_u32 v3, v4, 4, v3")
    for t in range(4):
        a(f"s_add_u32 s35, s33, {WS_Z+2048*t}")
        for mt in range(2):
            f = XIN + (mt * 4 + t) * 4
            a(f"buffer_load_dwordx4 v[{f}:{f+3}], v3, s[24:27], s35 offen offset:{512*mt}")
    for i in range(24):
        if i % 4 == 0: a(f"s_mov_b32 s35, {WS_TB+1024*i}")
        f = B1F + 4 * i
        a(f"buffer_load_dwordx4 v[{f}:{f+3}], v2, s[24:27], s35 offen offset:{1024*(i%4)}")
    SG, SGN = 5, 6
    a("v_and_b32 v7, 1, v1")
    a("v_lshlrev_b32 v7, 31, v7")
    a(f"v_xor_b32 v{SG}, 1.0, v7")
    a(f"v_xor_b32 v{SGN}, -1.0, v7")
    a("v_lshrrev_b32 v8, 5, v1")
    a("v_bfe_u32 v9, v1, 1, 4")
    a("v_lshl_add_u32 v8, v8, 4, v9")
    a("v_lshlrev_b32 v8, 4, v8")
    a("v_add_u32 v8, s34, v8")
    a("s_waitcnt vmcnt(0)")
    a("s_barrier")
    st(a, 1)
    a("s_cmp_gt_u32 s28, 288")
    a("s_cbranch_scc1 K2_END")
    def zero(base, n):
        for i in range(n): a(f"v_mov_b32 v{base+i}, 0")
    def mf(d, x, y):
        a(f"v_mfma_f32_32x32x16_f16 v[{d}:{d+15}], v[{x}:{x+3}], v[{y}:{y+3}], v[{d}:{d+15}]")
    zero(ACC, 64)
    for mt in range(2):
        for nt in range(2):
            for t in range(4):
                mf(ACC + (mt * 2 + nt) * 16, XIN + (mt * 4 + t) * 4, B1F + (nt * 4 + t) * 4)
    for mt in range(2):
        for nt in range(2):
            tile = mt * 2 + nt; D = ACC + tile * 16
            for half in range(2):
                for jp in range(4 * half, 4 * half + 4):
                    a(f"ds_read_b128 v[{TMP+4*(jp&3)}:{TMP+4*(jp&3)+3}], v2 offset:{(tile*8+jp)*1024}")
                a("s_waitcnt lgkmcnt(0)")
                for jp in range(4 * half, 4 * half + 4):
                    w = TMP + 4 * (jp & 3)
                    for e in range(2):
                        j = 2 * jp + e
                        a(f"v_mul_f32 v{w+2*e}, v{D+j}, v{w+2*e}")
                        a(f"v_fmac_f32_dpp v{w+2*e}, v{D+j}, v{w+2*e+1} quad_perm:[1,0,3,2] row_mask:0xf bank_mask:0xf")
                    u = jp >> 2
                    dst = XIN + (nt * 4 + 2 * mt + u) * 4 + (jp & 3)
                    a(f"v_cvt_pk_f16_f32 v{dst}, v{w}, v{w+2}")
    for nt in range(2):
        for mt2 in range(2):
            P = ACC + mt2 * 32; Q = P + 16
            zero(P, 32)
            for ks in range(4):
                mf(P, F64C + (mt2 * 4 + ks) * 4, XIN + (nt * 4 + ks) * 4)
            for ks in range(4):
                mf(Q, F64S + (mt2 * 4 + ks) * 4, XIN + (nt * 4 + ks) * 4)
            for g in range(4):
                a(f"ds_read_b128 v[{TMP+4*g}:{TMP+4*g+3}], v8 offset:{(nt*2+mt2)*2048+g*512}")
            for j in range(16):
                a(f"v_fmac_f32_dpp v{P+j}, v{Q+j}, v{SG} quad_perm:[1,0,3,2] row_mask:0xf bank_mask:0xf")
            a("s_waitcnt lgkmcnt(0)")
            for j in range(16):
                w = TMP + j
                a(f"v_mul_f32_dpp v{Q+j}, v{P+j}, v{SGN} quad_perm:[1,0,3,2] row_mask:0xf bank_mask:0xf")
                a(f"v_fma_mix_f32 v{Q+j}, v{Q+j}, v{w}, 0 op_sel:[0,1,0] op_sel_hi:[0,1,0]")
                a(f"v_fma_mix_f32 v{P+j}, v{P+j}, v{w}, v{Q+j} op_sel:[0,0,0] op_sel_hi:[0,1,0]")
            for jp in range(8):
                dst = YP + (nt * 4 + 2 * mt2 + (jp >> 2)) * 4 + (jp & 3)
                a(f"v_cvt_pk_f16_f32 v{dst}, v{P+2*jp}, v{P+2*jp+1}")
    for mt3 in range(2):
        for nt3 in range(2):
            P = ACC + nt3 * 32; Q = P + 16
            zero(P, 32)
            for ks in range(4):
                mf(P, YP + (mt3 * 4 + ks) * 4, F64C + (nt3 * 4 + ks) * 4)
            for ks in range(4):
                mf(Q, YP + (mt3 * 4 + ks) * 4, F64S + (nt3 * 4 + ks) * 4)
            tile = mt3 * 2 + nt3
            for jq in range(4):
                a(f"ds_read_b128 v[{TMP+4*jq}:{TMP+4*jq+3}], v2 offset:{32768+(tile*4+jq)*1024}")
            for pp in range(8):
                j = 2 * pp
                a(f"v_sub_f32 v{P+j}, v{P+j}, v{Q+j+1}")
                a(f"v_add_f32 v{P+j+1}, v{P+j+1}, v{Q+j}")
            a("s_waitcnt lgkmcnt(0)")
            for pp in range(8):
                j = 2 * pp; c = TMP + 2 * pp; s = c + 1
                a(f"v_mul_f32 v{Q+j}, v{P+j}, v{c}")
                a(f"v_fma_f32 v{Q+j}, -v{P+j+1}, v{s}, v{Q+j}")
                a(f"v_mul_f32 v{Q+j+1}, v{P+j}, v{s}")
                a(f"v_fmac_f32 v{Q+j+1}, v{P+j+1}, v{c}")
                dst = XIN + (nt3 * 4 + 2 * mt3 + (pp >> 2)) * 4 + (pp & 3)
                a(f"v_cvt_pk_f16_f32 v{dst}, v{Q+j}, -v{Q+j+1}")
    zero(ACC, 64)
    for mt4 in range(2):
        for nt4 in range(2):
            for ks in range(4):
                mf(ACC + (mt4 * 2 + nt4) * 16, XIN + (mt4 * 4 + ks) * 4, B1F + (nt4 * 4 + ks) * 4)
    a("v_bfe_u32 v9, v1, 1, 4")
    a("v_lshlrev_b32 v9, 7, v9")
    a("v_lshrrev_b32 v10, 5, v1")
    a("v_lshl_add_u32 v9, v10, 4, v9")
    a("v_and_b32 v10, 1, v1")
    a("v_lshl_add_u32 v9, v10, 12, v9")
    a("s_lshl_b32 s36, s28, 13")
    a("s_cmp_eq_u32 s28, 288")
    a("s_cselect_b32 s36, 4096, s36")
    a(f"s_add_u32 s36, s36, {WS_YT}")
    a("s_cmp_eq_u32 s28, 0")
    a("s_cbranch_scc1 F_MASK")
    a("s_cmp_lg_u32 s28, 288")
    a("s_cbranch_scc1 F_NOMASK")
    a.label("F_MASK")
    a("s_mov_b32 exec_lo, 0x55555555")
    a("s_mov_b32 exec_hi, 0x55555555")
    a.label("F_NOMASK")
    O = XIN
    n = 0
    for mt4 in range(2):
        for nt4 in range(2):
            D = ACC + (mt4 * 2 + nt4) * 16
            for gam in range(2):
                o = O + 4 * n; n += 1
                for gg in range(2):
                    g = 2 * gam + gg
                    a(f"v_cvt_pk_f16_f32 v{o+2*gg}, v{D+4*g}, v{D+4*g+1}")
                    a(f"v_cvt_pk_f16_f32 v{o+2*gg+1}, v{D+4*g+2}, v{D+4*g+3}")
    a("s_mov_b64 s[40:41], exec")
    a("s_mov_b64 exec, -1")
    for i in range(8):
        o = O + 4 * i
        a(f"v_permlane32_swap_b32 v{o}, v{o+2}")
        a(f"v_permlane32_swap_b32 v{o+1}, v{o+3}")
    a("s_mov_b64 exec, s[40:41]")
    n = 0
    for mt4 in range(2):
        for nt4 in range(2):
            for gam in range(2):
                o = O + 4 * n; n += 1
                a(f"buffer_store_dwordx4 v[{o}:{o+3}], v9, s[24:27], s36 offen offset:{nt4*2048+mt4*64+gam*32}")
    st(a, 2); st(a, 3)
    dump(a, 4, "s3")

def gen_k2(stamps=False):
    a = Asm()
    STAMPS[0] = stamps
    st(a, 0)
    a("s_cmp_ge_u32 s2, 256")
    a("s_cbranch_scc1 K2_END")
    a("s_load_dwordx4 s[4:7], s[0:1], 32")
    a("s_load_dwordx2 s[8:9], s[0:1], 80")
    a("v_and_b32 v1, 63, v0")
    a("v_lshrrev_b32 v2, 6, v0")
    a("v_readfirstlane_b32 s3, v2")
    a("s_waitcnt lgkmcnt(0)")
    for base, (lo, n) in {12: (4, 2048 * 9216), 16: (8, 2359296), 20: (6, 9216), 24: (8, WS_END)}.items():
        a(f"s_mov_b32 s{base}, s{lo}")
        a(f"s_mov_b32 s{base+1}, s{lo+1}")
        a(f"s_mov_b32 s{base+2}, {n}")
        a(f"s_mov_b32 s{base+3}, 0x00020000")
    a("s_cmp_ge_u32 s2, 216")
    a("s_cbranch_scc1 K2_FFT")
    gemm1(a)
    a.label("K2_FFT")
    fft(a)
    a.label("K2_END")
    a("s_endpgm")
    return insert_hazard_nops(a.lines), 256
```

```python
from asmlib import *
from k1 import f2u, WS_H, WS_Z, WS_WT, WS_UX, WS_YT, WS_TB, WS_END, UXP
R = 9
STG = 17408
LDS = R * STG
BLOCK = 512
NA, NB = 9, 72
PFL = [0]

def gen_k3(stamps=False):
    a = Asm()
    def st(i):
        if stamps:
            a(f's_memtime s[{60+2*i}:{61+2*i}]')
    def rt(i):
        if stamps:
            a(f's_memrealtime s[{60+2*i}:{61+2*i}]')
    def dump(n, wreg):
        if stamps:
            a('s_waitcnt vmcnt(0) lgkmcnt(0)')
            a('s_mov_b64 exec, 1')
            a('s_lshl_b32 s56, s2, 3')
            a(f's_add_u32 s56, s56, {wreg}')
            a('s_lshl_b32 s56, s56, 6')
            a('s_add_u32 s56, s56, 0x1000000')
            a('s_mov_b32 s14, 0x2000000')
            a('v_mov_b32 v1, 0')
            for i in range(n):
                a(f'v_mov_b32 v2, s{60+2*i}')
                a(f'buffer_store_dword v2, v1, s[12:15], s56 offen offset:{4*i}')
    st(0); rt(1)
    a("s_cmp_ge_u32 s2, 256")
    a("s_cbranch_scc1 K3_END")
    a("s_load_dwordx2 s[4:5], s[0:1], 0")
    a("s_load_dwordx4 s[8:11], s[0:1], 48")
    a("s_load_dwordx2 s[6:7], s[0:1], 64")
    a("s_load_dwordx2 s[28:29], s[0:1], 80")
    a("v_and_b32 v1, 63, v0")
    a("v_lshrrev_b32 v2, 6, v0")
    a("v_readfirstlane_b32 s3, v2")
    a("s_and_b32 s36, s2, 7")
    a("s_lshr_b32 s37, s2, 3")
    a("s_lshl_b32 s36, s36, 2")
    a("s_and_b32 s38, s37, 3")
    a("s_add_u32 s36, s36, s38")
    a("s_lshr_b32 s37, s37, 2")
    a("s_lshl_b32 s38, s36, 7")
    a("s_mul_i32 s39, s37, 72")
    a("s_waitcnt lgkmcnt(0)")
    a(f"s_add_u32 s16, s28, {WS_YT}")
    a("s_addc_u32 s17, s29, 0")
    a(f"s_mov_b32 s18, {576*4096}")
    a("s_mov_b32 s19, 0x00020000")
    for base, (lo, n) in {12: (28, WS_END), 20: (4, 2359296), 24: (6, 2359296), 32: (10, 4096)}.items():
        a(f"s_mov_b32 s{base}, s{lo}")
        a(f"s_mov_b32 s{base+1}, s{lo+1}")
        a(f"s_mov_b32 s{base+2}, {n}")
        a(f"s_mov_b32 s{base+3}, 0x00020000")
    a("s_cmp_lt_u32 s3, 4")
    a("s_cbranch_scc1 K3_CONS")
    a("s_sub_u32 s3, s3, 4")
    VU0, VU1, VUQ, VS0, VS1 = 2, 3, 4, 5, 6
    a("v_lshrrev_b32 v7, 3, v1")
    a("v_and_b32 v8, 7, v1")
    a("v_lshrrev_b32 v9, 4, v1")
    a("v_xor_b32 v10, v8, v9")
    a(f"v_mul_u32_u24 v11, {UXP}, v7")
    a(f"v_lshl_add_u32 v{VU0}, v10, 4, v11")
    a("v_xor_b32 v10, 4, v10")
    a(f"v_lshl_add_u32 v{VU1}, v10, 4, v11")
    a(f"v_add_u32 v{VU1}, {8*UXP-1024}, v{VU1}")
    a("v_xor_b32 v10, s3, v8")
    a(f"v_lshl_add_u32 v{VUQ}, v10, 4, v11")
    a("v_bfe_u32 v10, v1, 4, 1")
    a("v_lshlrev_b32 v10, 1, v10")
    a("v_xor_b32 v10, v10, v8")
    a("v_lshlrev_b32 v11, 12, v7")
    a(f"v_lshl_add_u32 v{VS0}, v10, 4, v11")
    a("v_xor_b32 v10, 4, v10")
    a(f"v_lshl_add_u32 v{VS1}, v10, 4, v11")
    a(f"v_add_u32 v{VS1}, {8*4096-1024}, v{VS1}")
    a(f"s_mul_i32 s40, s39, {UXP}")
    a(f"s_add_u32 s40, s40, {WS_UX}")
    a(f"s_mul_i32 s41, s3, {16*UXP}")
    a("s_add_u32 s41, s41, s40")
    a(f"s_mul_i32 s42, s3, {2*UXP}")
    a("s_add_u32 s42, s42, s40")
    a(f"s_add_u32 s42, s42, {64*UXP}")
    a("s_lshl_b32 s43, s3, 16")
    a("s_add_u32 s43, s43, s38")
    a("s_mov_b32 s44, s43")
    a("s_lshl_b32 s45, s3, 11")
    a("s_lshl_b32 s46, s3, 8")
    a("s_add_u32 s46, s46, 8192")
    a("s_add_u32 s47, s45, 9216")
    a("s_mov_b32 s48, 0")
    a("s_mov_b32 s49, 0")
    def dma():
        a(f"s_cmp_eq_u32 s49, {NA}")
        a("s_cselect_b32 s16, s8, s16")
        a("s_cselect_b32 s17, s9, s17")
        a(f"s_cselect_b32 s18, {4608*4096}, s18")
        a("s_cselect_b32 s43, s44, s43")
        a("s_add_u32 s50, s48, s45")
        a("s_mov_b32 m0, s50")
        a("s_add_u32 s50, s48, s47")
        a(f"buffer_load_dwordx4 v{VU0}, s[12:15], s41 offen lds")
        a(f"buffer_load_dwordx4 v{VU1}, s[12:15], s41 offen offset:1024 lds")
        a("s_mov_b32 m0, s50")
        a("s_add_u32 s50, s48, s46")
        a(f"buffer_load_dwordx4 v{VS0}, s[16:19], s43 offen lds")
        a(f"buffer_load_dwordx4 v{VS1}, s[16:19], s43 offen offset:1024 lds")
        a("s_mov_b32 m0, s50")
        a("s_mov_b64 exec, 0xffff")
        a(f"buffer_load_dwordx4 v{VUQ}, s[12:15], s42 offen lds")
        a("s_mov_b64 exec, -1")
        a("s_add_u32 s41, s41, 128")
        a("s_add_u32 s42, s42, 128")
        a(f"s_add_u32 s43, s43, {64*4096}")
        a("s_add_u32 s49, s49, 1")
        a(f"s_add_u32 s48, s48, {STG}")
        a(f"s_cmp_ge_u32 s48, {R*STG}")
        a("s_cselect_b32 s48, 0, s48")
    for i in range(R - 1): dma()
    a(f"s_waitcnt vmcnt({5*(R-3)})")
    a("s_barrier")
    st(2)
    a("s_mov_b32 s53, 0")
    a.label("K3_LLOOP")
    a(f"s_waitcnt vmcnt({5*(R-4)})")
    a("s_barrier")
    dma()
    a("s_add_u32 s53, s53, 1")
    a(f"s_cmp_lt_u32 s53, {NA+NB-(R-1)}")
    a("s_cbranch_scc1 K3_LLOOP")
    for t in range(R - 1):
        a(f"s_waitcnt vmcnt({max(0, 5*(R-4-t))})")
        a("s_barrier")
    st(3)
    a("s_waitcnt vmcnt(0)")
    st(4); rt(5)
    a("s_add_u32 s3, s3, 4")
    dump(6, "s3")
    a("s_endpgm")
    a.label("K3_CONS")
    VA, VB0, VB1, CA, CB0, CB1 = 2, 3, 4, 5, 6, 7
    a("s_and_b32 s40, s3, 1")
    a("s_lshr_b32 s41, s3, 1")
    a("v_and_b32 v13, 15, v1")
    a("v_lshrrev_b32 v14, 4, v1")
    a("v_bfe_u32 v16, v1, 1, 3")
    a("v_xor_b32 v15, v14, v16")
    a("v_lshlrev_b32 v13, 7, v13")
    a(f"v_lshl_add_u32 v{VA}, v15, 4, v13")
    a("s_mul_i32 s42, s40, 6144")
    a(f"v_add_u32 v{VA}, s42, v{VA}")
    a("v_bfe_u32 v13, v1, 2, 2")
    a("v_lshl_add_u32 v15, v14, 3, v13")
    a("v_lshlrev_b32 v15, 7, v15")
    a("v_bfe_u32 v16, v1, 1, 1")
    a("s_lshl_b32 s42, s41, 2")
    a("v_add_u32 v16, s42, v16")
    a("v_bfe_u32 v17, v1, 3, 1")
    a("v_lshlrev_b32 v17, 1, v17")
    a("v_xor_b32 v16, v16, v17")
    a("v_and_b32 v17, 1, v14")
    a("v_lshlrev_b32 v17, 2, v17")
    a("v_xor_b32 v16, v16, v17")
    a("v_lshl_add_u32 v15, v16, 4, v15")
    a("v_and_b32 v16, 1, v1")
    a("v_lshl_add_u32 v15, v16, 3, v15")
    a(f"v_add_u32 v{VB0}, 9216, v15")
    a(f"v_xor_b32 v{VB1}, 32, v{VB0}")
    CA2 = 8
    ACA, ACB = 16, 40
    FR = [64, 104, 144]
    def read_list(setn):
        f = FR[setn]; L = []
        for k in range(2):
            for mi in range(3):
                L.append(f"ds_read_b128 v[{f+20*k+4*mi}:{f+20*k+4*mi+3}], v{CA if k == 0 else CA2} offset:{mi*2048}")
            for ni, cb in enumerate((CB0, CB1)):
                L.append(f"ds_read_b64_tr_b16 v[{f+20*k+12+4*ni}:{f+20*k+12+4*ni+1}], v{cb} offset:{k*4096}")
                L.append(f"ds_read_b64_tr_b16 v[{f+20*k+12+4*ni+2}:{f+20*k+12+4*ni+3}], v{cb} offset:{k*4096+512}")
        return L
    def mfma_list(setn, ty, acc, first, nm):
        f = FR[setn]; L = []
        for k in range(2):
            for mi in range(nm):
                for ni in range(2):
                    c = acc + (mi * 2 + ni) * 4
                    src = "0" if (first and k == 0) else f"v[{c}:{c+3}]"
                    L.append(f"v_mfma_f32_16x16x32_{ty} v[{c}:{c+3}], v[{f+20*k+4*mi}:{f+20*k+4*mi+3}], v[{f+20*k+12+4*ni}:{f+20*k+12+4*ni+3}], {src}")
        return L
    def addrs():
        a(f"v_add_u32 v{CA}, s52, v{VA}")
        a(f"v_add_u32 v{CB0}, s52, v{VB0}")
        a(f"v_add_u32 v{CB1}, s52, v{VB1}")
        a(f"v_xor_b32 v{CA2}, 64, v{CA}")
    def adv():
        a(f"s_add_u32 s52, s52, {STG}")
        a(f"s_cmp_ge_u32 s52, {R*STG}")
        a("s_cselect_b32 s52, 0, s52")
        addrs()
    def rlist(setn, nm):
        rl = read_list(setn)
        if nm == 2: rl = [x for x in rl if "offset:4096" not in x or "tr_b16" in x]
        return rl
    def it(par, ty, acc, nm, first=False):
        adv()
        if nm == 2:
            global PFL
            PFL[0] += 1
            a("s_cmp_lg_u32 s90, s89")
            a(f"s_cbranch_scc1 K3_NPF{PFL[0]}")
            a("buffer_load_dword v241, v240, s[84:87], s88 offen")
            a(f"s_add_u32 s88, s88, {8*64*4096}")
            a("s_add_u32 s89, s89, 8")
            a.label(f"K3_NPF{PFL[0]}")
            a("s_add_u32 s90, s90, 1")
        rl = rlist((par + 2) % 3, nm)
        a(f"s_waitcnt lgkmcnt({len(rl)})")
        a("s_barrier")
        ml = mfma_list(par, ty, acc, first, nm)
        ri = 0
        for i, mline in enumerate(ml):
            a(mline)
            want = min(len(rl), (i + 1) * 2)
            while ri < want:
                a(rl[ri]); ri += 1
    for wm in range(2):
        nm = 3 - wm
        if wm == 0:
            a("s_cmp_eq_u32 s40, 1")
            a("s_cbranch_scc1 K3_C1")
        else:
            a.label("K3_C1")
        if wm == 1:
            a("v_lshlrev_b32 v240, 12, v1")
            a("s_mov_b32 s84, s8")
            a("s_mov_b32 s85, s9")
            a(f"s_mov_b32 s86, {4608*4096}")
            a("s_mov_b32 s87, 0x00020000")
            a("s_lshl_b32 s88, s37, 18")
            a("s_add_u32 s88, s88, s38")
            a("s_add_u32 s89, s37, 2")
            a("s_cmp_lg_u32 s3, 1")
            a("s_cselect_b32 s89, 1000, s89")
            a("s_cbranch_scc1 K3_NOPF0")
            a("buffer_load_dword v241, v240, s[84:87], s88 offen")
            a(f"s_add_u32 s88, s88, {8*64*4096}")
            a("buffer_load_dword v241, v240, s[84:87], s88 offen")
            a(f"s_add_u32 s88, s88, {8*64*4096}")
            a.label("K3_NOPF0")
            a("s_mov_b32 s90, 0")
        a("s_barrier")
        a("s_mov_b32 s52, 0")
        addrs()
        for x in rlist(0, nm): a(x)
        adv()
        for x in rlist(1, nm): a(x)
        st(2)
        it(0, "f16", ACA, nm, True); it(1, "f16", ACA, nm); it(2, "f16", ACA, nm)
        a("s_mov_b32 s53, 0")
        a.label(f"K3_LA{wm}")
        it(0, "f16", ACA, nm); it(1, "f16", ACA, nm); it(2, "f16", ACA, nm)
        a("s_add_u32 s53, s53, 1")
        a("s_cmp_lt_u32 s53, 2")
        a(f"s_cbranch_scc1 K3_LA{wm}")
        it(0, "bf16", ACB, nm, True); it(1, "bf16", ACB, nm); it(2, "bf16", ACB, nm)
        a("s_mov_b32 s53, 0")
        a.label(f"K3_LB{wm}")
        it(0, "bf16", ACB, nm); it(1, "bf16", ACB, nm); it(2, "bf16", ACB, nm)
        a("s_add_u32 s53, s53, 1")
        a("s_cmp_lt_u32 s53, 22")
        a(f"s_cbranch_scc1 K3_LB{wm}")
        it(0, "bf16", ACB, nm); it(1, "bf16", ACB, nm)
        a("v_and_b32 v9, 15, v1")
        a("v_lshrrev_b32 v10, 4, v1")
        a("v_mul_u32_u24 v11, 1152, v9")
        a("v_lshl_add_u32 v11, v10, 3, v11")
        a("s_lshl_b32 s54, s36, 6")
        a("s_lshl_b32 s55, s41, 5")
        a("s_add_u32 s54, s54, s55")
        a("s_mul_i32 s54, s54, 1152")
        a("s_lshl_b32 s55, s39, 1")
        a("s_add_u32 s54, s54, s55")
        a(f"s_add_u32 s54, s54, {96*wm}")
        XR = 200
        for mi in range(nm):
            for ni in range(2):
                a(f"s_add_u32 s55, s54, {ni*16*1152+mi*32}")
                a(f"buffer_load_dwordx2 v[{XR+(mi*2+ni)*2}:{XR+(mi*2+ni)*2+1}], v11, s[20:23], s55 offen")
        a("v_lshlrev_b32 v12, 1, v9")
        a("s_lshl_b32 s55, s41, 6")
        a("s_add_u32 s55, s55, s38")
        for ni in range(2):
            a(f"buffer_load_ushort v{220+ni}, v12, s[32:35], s55 offen offset:{32*ni}")
        it(2, "bf16", ACB, nm)
        st(3)
        a("s_waitcnt vmcnt(0)")
        a("v_lshlrev_b32 v220, 16, v220")
        a("v_lshlrev_b32 v221, 16, v221")
        if wm == 1:
            a("v_cmp_gt_u32 vcc, 2, v10")
        for mi in range(nm):
            for ni in range(2):
                t = mi * 2 + ni
                A_ = ACA + t * 4; B_ = ACB + t * 4
                xr = XR + t * 2
                T = 224
                a(f"v_cvt_pk_bf16_f32 v{T}, v{A_}, v{A_+1}")
                a(f"v_cvt_pk_bf16_f32 v{T+1}, v{A_+2}, v{A_+3}")
                a(f"v_cvt_pk_bf16_f32 v{T+2}, v{B_}, v{B_+1}")
                a(f"v_cvt_pk_bf16_f32 v{T+3}, v{B_+2}, v{B_+3}")
                def unp(dst, src):
                    a(f"v_lshlrev_b32 v{dst}, 16, v{src}")
                    a(f"v_and_b32 v{dst+1}, 0xffff0000, v{src}")
                unp(A_, T); unp(A_ + 2, T + 1); unp(B_, T + 2); unp(B_ + 2, T + 3)
                unp(T + 4, xr); unp(T + 6, xr + 1)
                a(f"v_pk_add_f32 v[{A_}:{A_+1}], v[{A_}:{A_+1}], v[{T+4}:{T+5}]")
                a(f"v_pk_add_f32 v[{A_+2}:{A_+3}], v[{A_+2}:{A_+3}], v[{T+6}:{T+7}]")
                for r in range(4):
                    a(f"v_add_f32 v{B_+r}, v{B_+r}, v{220+ni}")
                a(f"v_cvt_pk_bf16_f32 v{T}, v{A_}, v{A_+1}")
                a(f"v_cvt_pk_bf16_f32 v{T+1}, v{A_+2}, v{A_+3}")
                a(f"v_cvt_pk_bf16_f32 v{T+2}, v{B_}, v{B_+1}")
                a(f"v_cvt_pk_bf16_f32 v{T+3}, v{B_+2}, v{B_+3}")
                unp(A_, T); unp(A_ + 2, T + 1); unp(B_, T + 2); unp(B_ + 2, T + 3)
                a(f"v_pk_add_f32 v[{A_}:{A_+1}], v[{A_}:{A_+1}], v[{B_}:{B_+1}]")
                a(f"v_pk_add_f32 v[{A_+2}:{A_+3}], v[{A_+2}:{A_+3}], v[{B_+2}:{B_+3}]")
                a(f"v_cvt_pk_bf16_f32 v{A_}, v{A_}, v{A_+1}")
                a(f"v_cvt_pk_bf16_f32 v{A_+1}, v{A_+2}, v{A_+3}")
                a(f"s_add_u32 s55, s54, {ni*16*1152+mi*32}")
                if wm == 1 and mi == 1:
                    a("s_and_saveexec_b64 s[58:59], vcc")
                a(f"buffer_store_dwordx2 v[{A_}:{A_+1}], v11, s[24:27], s55 offen")
                if wm == 1 and mi == 1:
                    a("s_mov_b64 exec, s[58:59]")
        st(4); rt(5)
        dump(6, "s3")
        a("s_endpgm")
    a.label("K3_END")
    a("s_endpgm")
    return insert_hazard_nops(a.lines), 248
```

```python
import sys
from asmlib import *
import k1
import os
STAMPS = bool(os.environ.get('STAMPS'))
def build(which=("k1",)):
    hdr = open("parallel_sum__spectral_gfnet__mixer_token_mlp__prompt.s.ref").read().split("\n")
    top = [l for l in hdr if l.startswith(";") and "@launch" not in l and "Override" not in l and "grid=ceil" not in l]
    launches = []; codes = []; descs = []
    if "k1" in which:
        lines, nv = k1.gen_k1(stamps=bool(os.environ.get('ST1')))
        c, d = kernel_text("k1_kernel", lines, nv); codes.append(c); descs.append(d)
        launches.append(f"; @launch kernel=k1_kernel grid=(256,1,1) block=({k1.K1_BLOCK},1,1) lds={k1.K1_LDS}")
    if "k2" in which:
        import k2
        lines, nv = k2.gen_k2(stamps=STAMPS)
        c, d = kernel_text("k2_kernel", lines, nv); codes.append(c); descs.append(d)
        launches.append(f"; @launch kernel=k2_kernel grid=(256,1,1) block=(512,1,1) lds={k2.LDS}")
    if "k3" in which:
        import k3
        lines, nv = k3.gen_k3(stamps=STAMPS)
        c, d = kernel_text("k3_kernel", lines, nv); codes.append(c); descs.append(d)
        launches.append(f"; @launch kernel=k3_kernel grid=(256,1,1) block=({k3.BLOCK},1,1) lds={k3.LDS}")
    return "\n".join(top + launches) + "\n" + HEADER + "\n".join(codes) + '.section .rodata,"a"\n.p2align 6\n' + "\n".join(descs)
if __name__ == "__main__":
    which = sys.argv[2:] or ["k1", "k2", "k3"]
    open(sys.argv[1], "w").write(build(which))
```

```python
from asmlib import *
import struct
WS_H = 0
WS_Z = 0x240000
WS_WT = 0x490000
WS_UX = 0x6E0000
WS_YT = 0xCA0000
WS_TB = 0xEE0000
WS_END = 0xF00000
UXP = 10368
K1_BLOCK = 832
import os
PFPOS = int(os.environ.get('PFPOS', 1))
K1_LDS = 11264
import os
PF_ROWS = int(os.environ.get('PF_ROWS', 2048))
def f2u(x): return "0x%08x" % struct.unpack("<I", struct.pack("<f", x))[0]

def allreduce64(a, v, t):
    a(f"v_add_f32_dpp v{v}, v{v}, v{v} quad_perm:[1,0,3,2] row_mask:0xf bank_mask:0xf")
    a(f"v_add_f32_dpp v{v}, v{v}, v{v} quad_perm:[2,3,0,1] row_mask:0xf bank_mask:0xf")
    a(f"v_add_f32_dpp v{v}, v{v}, v{v} row_half_mirror row_mask:0xf bank_mask:0xf")
    a(f"v_add_f32_dpp v{v}, v{v}, v{v} row_mirror row_mask:0xf bank_mask:0xf")
    a(f"v_mov_b32 v{t}, v{v}")
    a(f"v_permlane16_swap_b32 v{v}, v{t}")
    a(f"v_add_f32 v{v}, v{v}, v{t}")
    a(f"v_mov_b32 v{t}, v{v}")
    a(f"v_permlane32_swap_b32 v{v}, v{t}")
    a(f"v_add_f32 v{v}, v{v}, v{t}")

def layernorm(a, src, dst, xf, tmp):
    s, t, mb, r = tmp, tmp + 1, tmp + 2, tmp + 4
    MK = tmp + 6
    for j in range(5):
        a(f"v_lshlrev_b32 v{xf+2*j}, 16, v{src+j}")
        a(f"v_and_b32 v{xf+2*j+1}, 0xffff0000, v{src+j}")
    D = tmp + 8
    a(f"v_pk_add_f32 v[{D}:{D+1}], v[{xf}:{xf+1}], v[{xf+2}:{xf+3}]")
    a(f"v_pk_add_f32 v[{D+2}:{D+3}], v[{xf+4}:{xf+5}], v[{xf+6}:{xf+7}]")
    a(f"v_pk_add_f32 v[{D}:{D+1}], v[{D}:{D+1}], v[{xf+8}:{xf+9}]")
    a(f"v_pk_add_f32 v[{D}:{D+1}], v[{D}:{D+1}], v[{D+2}:{D+3}]")
    a(f"v_add_f32 v{s}, v{D}, v{D+1}")
    allreduce64(a, s, t)
    a(f"v_mul_f32 v{s}, {f2u(1/576.)}, v{s}")
    a(f"v_cvt_pk_bf16_f32 v{mb}, v{s}, v{s}")
    a(f"v_mov_b32 v{t}, v{s}")
    a(f"v_lshlrev_b32 v{mb}, 16, v{mb}")
    a(f"v_mov_b32 v{mb+1}, v{mb}")
    for j in range(5):
        a(f"v_pk_add_f32 v[{D+2*j}:{D+2*j+1}], v[{xf+2*j}:{xf+2*j+1}], v[{s}:{t}] neg_lo:[0,1] neg_hi:[0,1]")
    a(f"v_pk_mul_f32 v[{D+8}:{D+9}], v[{D+8}:{D+9}], v[{MK}:{MK+1}]")
    a(f"v_pk_mul_f32 v[{D}:{D+1}], v[{D}:{D+1}], v[{D}:{D+1}]")
    for j in range(1, 5):
        a(f"v_pk_fma_f32 v[{D}:{D+1}], v[{D+2*j}:{D+2*j+1}], v[{D+2*j}:{D+2*j+1}], v[{D}:{D+1}]")
    a(f"v_add_f32 v{r}, v{D}, v{D+1}")
    allreduce64(a, r, r + 1)
    a(f"v_mul_f32 v{r}, {f2u(1/576.)}, v{r}")
    a(f"v_cvt_pk_bf16_f32 v{r}, v{r}, v{r}")
    a(f"v_lshlrev_b32 v{r}, 16, v{r}")
    a(f"v_add_f32 v{r}, {f2u(1e-5)}, v{r}")
    a(f"v_cvt_pk_bf16_f32 v{r}, v{r}, v{r}")
    a(f"v_lshlrev_b32 v{r}, 16, v{r}")
    a(f"v_sqrt_f32 v{r}, v{r}")
    for j in range(5):
        a(f"v_pk_add_f32 v[{xf+2*j}:{xf+2*j+1}], v[{xf+2*j}:{xf+2*j+1}], v[{mb}:{mb+1}] neg_lo:[0,1] neg_hi:[0,1]")
    a(f"v_cvt_pk_bf16_f32 v{r}, v{r}, v{r}")
    a(f"v_lshlrev_b32 v{r}, 16, v{r}")
    a(f"v_rcp_f32 v{r}, v{r}")
    for j in range(5):
        a(f"v_cvt_pk_bf16_f32 v{dst+j}, v{xf+2*j}, v{xf+2*j+1}")
    a(f"v_mov_b32 v{r+1}, v{r}")
    for j in range(5):
        a(f"v_lshlrev_b32 v{xf+2*j}, 16, v{dst+j}")
        a(f"v_and_b32 v{xf+2*j+1}, 0xffff0000, v{dst+j}")
    for j in range(5):
        a(f"v_pk_mul_f32 v[{xf+2*j}:{xf+2*j+1}], v[{xf+2*j}:{xf+2*j+1}], v[{r}:{r+1}]")
    a(f"v_pk_mul_f32 v[{xf+8}:{xf+9}], v[{xf+8}:{xf+9}], v[{MK}:{MK+1}]")
    for j in range(5):
        a(f"v_cvt_pk_bf16_f32 v{dst+j}, v{xf+2*j}, v{xf+2*j+1}")

def sincos(a, ang, c, s):
    a(f"v_fract_f32 v{ang}, v{ang}")
    a(f"v_cos_f32 v{c}, v{ang}")
    a(f"v_sin_f32 v{s}, v{ang}")

def gen_k1(stamps=False):
    a = Asm()
    def st(i):
        if stamps:
            a(f's_memrealtime s[{60+2*i}:{61+2*i}]')
    def prefetch():
        a("s_and_b32 s46, s2, 7")
        a("s_mul_i32 s47, s46, 1280")
        a("s_mul_i32 s52, s46, 1024")
        a("s_add_u32 s52, s52, 1024")
        a("s_cmp_lt_u32 s46, 4")
        a("s_cselect_b32 s53, 20, 16")
        a("s_cselect_b32 s46, s47, s52")
        a("s_lshr_b32 s47, s2, 3")
        rows_per = PF_ROWS // 32
        a(f"s_mul_i32 s47, s47, {rows_per*9216}")
        a("s_add_u32 s46, s46, s47")
        a("v_subrev_u32 v6, 512, v0")
        a("v_mul_u32_u24 v7, 3277, v6")
        a("v_lshrrev_b32 v7, 16, v7")
        a("v_mul_u32_u24 v8, 20, v7")
        a("v_sub_u32 v8, v6, v8")
        a("v_mul_u32_u24 v7, 9216, v7")
        a("v_lshl_add_u32 v6, v8, 6, v7")
        a("v_cmp_gt_u32 vcc, s53, v8")
        a("s_and_b64 exec, exec, vcc")
        for p in range((rows_per + 15) // 16 if rows_per else 0):
            if (p + 1) * 16 > rows_per:
                a(f"v_cmp_gt_u32 vcc, {(rows_per - 16*p)*9216}, v6")
                a("s_and_saveexec_b64 s[36:37], vcc")
            a(f"buffer_load_dword v{124+(p&3)}, v6, s[48:51], s46 offen")
            if (p + 1) * 16 > rows_per:
                a("s_mov_b64 exec, s[36:37]")
            a(f"s_add_u32 s46, s46, {16*9216}")
        a("s_mov_b64 exec, -1")
    st(0)
    a("s_cmp_ge_u32 s2, 256")
    a("s_cbranch_scc1 K1_END")
    a("s_load_dwordx2 s[4:5], s[0:1], 0")
    a("s_load_dwordx4 s[8:11], s[0:1], 8")
    a("s_load_dwordx2 s[6:7], s[0:1], 80")
    a("s_load_dwordx2 s[44:45], s[0:1], 32")
    a("v_and_b32 v1, 63, v0")
    a("v_lshrrev_b32 v2, 6, v0")
    a("v_readfirstlane_b32 s3, v2")
    a("s_lshr_b32 s28, s2, 5")
    a("s_and_b32 s29, s2, 31")
    a("s_lshr_b32 s30, s28, 1")
    a("s_and_b32 s31, s28, 1")
    a("s_lshl_b32 s30, s30, 3")
    a("s_lshl_b32 s31, s31, 1")
    a("s_add_u32 s30, s30, s31")
    a("s_bfe_u32 s31, s3, 0x10001")
    a("s_lshl_b32 s31, s31, 2")
    a("s_add_u32 s30, s30, s31")
    a("s_and_b32 s31, s3, 1")
    a("s_add_u32 s30, s30, s31")
    a("s_lshl_b32 s30, s30, 6")
    a("s_lshl_b32 s31, s29, 1")
    a("s_add_u32 s30, s30, s31")
    a("s_lshr_b32 s31, s3, 2")
    a("s_add_u32 s30, s30, s31")
    a("s_mul_i32 s43, s30, 192")
    a("s_mul_i32 s30, s30, 1152")
    a("v_lshlrev_b32 v3, 2, v1")
    a("s_waitcnt lgkmcnt(0)")
    for base, (lo, n) in {12: (4, 2359296), 16: (8, 1183744), 20: (10, 1183744), 24: (6, WS_END), 48: (44, 2048*9216)}.items():
        a(f"s_mov_b32 s{base}, s{lo}")
        a(f"s_mov_b32 s{base+1}, s{lo+1}")
        a(f"s_mov_b32 s{base+2}, {n}")
        a(f"s_mov_b32 s{base+3}, 0x00020000")
    XD = 10
    a("v_mov_b32 v14, 0")
    a("s_cmp_ge_u32 s3, 8")
    a("s_cbranch_scc1 K1_NOX")
    for j in range(4):
        a(f"buffer_load_dword v{XD+j}, v3, s[12:15], s30 offen offset:{256*j}")
    a("s_mov_b64 exec, 0xffffffff")
    a(f"buffer_load_dword v{XD+4}, v3, s[12:15], s30 offen offset:1024")
    a("s_mov_b64 exec, -1")
    a.label("K1_NOX")
    st(1)
    WR, WI = 20, 28
    a("s_and_b32 s32, s2, 15")
    a("s_lshr_b32 s33, s2, 4")
    a("s_lshl_b32 s34, s32, 1")
    a("s_lshl_b32 s35, s33, 7")
    a("s_add_u32 s34, s34, s35")
    a("s_mul_i32 s34, s34, 578")
    a("v_lshlrev_b32 v5, 1, v0")
    a("s_cmp_ge_u32 s3, 5")
    a("s_cbranch_scc1 K1_NOW")
    a("v_cmp_gt_u32 vcc, 289, v0")
    a("s_and_saveexec_b64 s[36:37], vcc")
    for dl in range(2):
        for r in range(4):
            off = (dl + 32 * r) * 578
            a(f"s_add_u32 s35, s34, {off}")
            a(f"buffer_load_ushort v{WR+dl*4+r}, v5, s[16:19], s35 offen nt")
            a(f"buffer_load_ushort v{WI+dl*4+r}, v5, s[20:23], s35 offen nt")
    a("s_mov_b64 exec, s[36:37]")
    a.label("K1_NOW")
    a("s_cmp_lt_u32 s3, 8")
    a("s_cbranch_scc1 K1_LNROLE")
    if PFPOS == 0:
        prefetch()
    a.label("K1_NOPF")
    BC, BS = 40, 60
    TW = 80
    KF, QK, AN, T0, T1, T2 = 86, 87, 88, 89, 90, 91
    a("v_and_b32 v6, 15, v1")
    a("v_lshrrev_b32 v7, 4, v1")
    a("s_sub_u32 s35, s3, 8")
    a("s_lshl_b32 s35, s35, 4")
    a("v_add_u32 v8, s35, v6")
    a(f"v_cvt_f32_u32 v{KF}, v8")
    a(f"v_mul_f32 v{KF}, {f2u(1/144.)}, v{KF}")
    a(f"v_cvt_f32_u32 v{QK}, v7")
    a(f"v_mul_f32 v{QK}, v{QK}, v{KF}")
    a(f"v_add_f32 v{QK}, v{QK}, v{QK}")
    sc = f2u(1 / 24.)
    for t5 in range(5):
        for e in range(8):
            if t5 < 4:
                a(f"v_fmamk_f32 v{AN}, v{KF}, {f2u(float(8*t5+(e>>2)+32*(e&3)))}, v{QK}")
            else:
                if e & 1: continue
                a(f"v_add_f32 v{AN}, v{QK}, v{QK}")
                a(f"v_fmamk_f32 v{AN}, v{KF}, {f2u(float(128+e//2))}, v{AN}")
            sincos(a, AN, T0, T1)
            if e & 1 == 0:
                a(f"v_mul_f32 v92, {sc}, v{T0}")
                a(f"v_mul_f32 v93, {sc}, v{T1}")
                if t5 == 4:
                    a(f"v_cvt_pk_f16_f32 v{BC+4*t5+e//2}, v92, 0")
                    a(f"v_cvt_pk_f16_f32 v{BS+4*t5+e//2}, v93, 0")
            else:
                a(f"v_mul_f32 v{T0}, {sc}, v{T0}")
                a(f"v_mul_f32 v{T1}, {sc}, v{T1}")
                a(f"v_cvt_pk_f16_f32 v{BC+4*t5+e//2}, v92, v{T0}")
                a(f"v_cvt_pk_f16_f32 v{BS+4*t5+e//2}, v93, v{T1}")
    for r in range(1, 4):
        a(f"v_mul_f32 v{AN}, {f2u(r/4.)}, v{KF}")
        sincos(a, AN, TW + 2 * (r - 1), TW + 2 * (r - 1) + 1)
    st(2)
    a("s_branch K1_NOLN")
    a.label("K1_LNROLE")
    a("s_cmp_ge_u32 s2, 192")
    a("s_cbranch_scc1 K1_TABS")
    a("v_cmp_gt_u32 vcc, 288, v0")
    a("s_and_saveexec_b64 s[36:37], vcc")
    a("s_cbranch_execz K1_GDONE")
    a("s_mul_i32 s38, s2, 3")
    a("v_cmp_eq_u32 vcc, 0, v0")
    a(f"s_mov_b32 s40, 7456541")
    a(f"s_mov_b32 s41, 576")
    a("v_lshlrev_b32 v9, 2, v0")
    for i in range(3):
        a(f"s_add_u32 s39, s38, {i}")
        a(f"v_mul_u32_u24 v{T0}, s39, v0")
        a(f"v_mul_hi_u32 v{T1}, v{T0}, s40")
        a(f"v_mul_u32_u24 v{T1}, s41, v{T1}")
        a(f"v_sub_u32 v{T0}, v{T0}, v{T1}")
        a(f"v_cvt_f32_u32 v{AN}, v{T0}")
        a(f"v_mul_f32 v{AN}, {f2u(1/576.)}, v{AN}")
        a(f"v_cos_f32 v{T0}, v{AN}")
        a(f"v_sin_f32 v{T1}, v{AN}")
        a(f"v_mul_f32 v{T0}, {f2u(2/24.)}, v{T0}")
        a(f"v_mul_f32 v{T1}, {f2u(2/24.)}, v{T1}")
        a(f"v_cvt_pk_f16_f32 v{T0}, v{T0}, v{T1}")
        a("s_and_b32 s42, s39, 1")
        a("s_lshl_b32 s42, s42, 31")
        h24 = struct.unpack("<H", struct.pack("<e", 1 / 24.))[0]
        a(f"s_or_b32 s42, s42, {hex(h24 | (h24 << 16))}")
        a(f"v_mov_b32 v{T1}, s42")
        a(f"v_cndmask_b32 v{T0}, v{T0}, v{T1}, vcc")
        a(f"s_mul_i32 s42, s39, {UXP}")
        a(f"s_add_u32 s42, s42, {WS_UX}")
        a(f"buffer_store_dword v{T0}, v9, s[24:27], s42 offen")
    a.label("K1_GDONE")
    a("s_mov_b64 exec, s[36:37]")
    a("s_branch K1_TABDONE")
    a.label("K1_TABS")
    a("s_cmp_ge_u32 s3, 4")
    a("s_cbranch_scc1 K1_TABDONE")
    a("s_sub_u32 s38, s2, 192")
    a("s_lshl_b32 s38, s38, 8")
    a("v_add_u32 v9, s38, v0")
    I = 9
    L5, H, X0, X1, X2, X3 = 92, 93, 94, 95, 96, 97
    a(f"v_and_b32 v{L5}, 31, v1")
    a(f"v_lshrrev_b32 v{H}, 5, v1")
    a("s_cmp_ge_u32 s2, 200")
    a("s_cbranch_scc1 K1_TF64")
    a(f"v_and_b32 v{X0}, 3, v{I}")
    a(f"v_bfe_u32 v{X1}, v{I}, 2, 6")
    a(f"v_bfe_u32 v{X2}, v{I}, 8, 2")
    a(f"v_lshrrev_b32 v{X3}, 10, v{I}")
    a(f"v_lshlrev_b32 v{T0}, 3, v{X2}")
    a(f"v_lshrrev_b32 v{T1}, 1, v{X0}")
    a(f"v_lshl_add_u32 v{T0}, v{T1}, 2, v{T0}")
    a(f"v_lshrrev_b32 v{T1}, 5, v{X1}")
    a(f"v_lshl_add_u32 v{T0}, v{T1}, 1, v{T0}")
    a(f"v_and_b32 v{T1}, 1, v{X0}")
    a(f"v_add_u32 v{T0}, v{T0}, v{T1}")
    a(f"v_bfe_u32 v{T1}, v{X1}, 1, 4")
    a(f"v_lshl_add_u32 v{T1}, v{X3}, 4, v{T1}")
    a(f"v_mul_u32_u24 v{T0}, v{T0}, v{T1}")
    a(f"v_and_b32 v{T0}, 31, v{T0}")
    a(f"v_cvt_f32_u32 v{AN}, v{T0}")
    a(f"v_mul_f32 v{AN}, {f2u(1/32.)}, v{AN}")
    a(f"v_cos_f32 v{T0}, v{AN}")
    a(f"v_sin_f32 v{T1}, v{AN}")
    s32 = f2u(32 ** -0.5)
    a(f"v_mul_f32 v{T0}, {s32}, v{T0}")
    a(f"v_mul_f32 v{T1}, {s32}, v{T1}")
    a(f"v_cvt_pk_f16_f32 v{X2}, v{T0}, v{T1}")
    a(f"v_sub_f32 v{T1}, 0, v{T1}")
    a(f"v_cvt_pk_f16_f32 v{X3}, v{T1}, v{T0}")
    a(f"v_and_b32 v{X1}, 1, v{X1}")
    a(f"v_cmp_eq_u32 vcc, 1, v{X1}")
    a(f"v_cndmask_b32 v{X2}, v{X2}, v{X3}, vcc")
    a(f"v_lshlrev_b32 v{T0}, 2, v{I}")
    a(f"s_mov_b32 s38, {WS_TB}")
    a(f"buffer_store_dword v{X2}, v{T0}, s[24:27], s38 offen")
    a("s_branch K1_TABDONE")
    a.label("K1_TF64")
    a("s_cmp_ge_u32 s2, 216")
    a("s_cbranch_scc1 K1_TTW1")
    a(f"v_subrev_u32 v{I}, 2048, v{I}")
    a(f"v_and_b32 v{X0}, 3, v{I}")
    a(f"v_bfe_u32 v{X1}, v{I}, 2, 6")
    a(f"v_bfe_u32 v{X2}, v{I}, 8, 2")
    a(f"v_bfe_u32 v{X3}, v{I}, 10, 1")
    a(f"v_and_b32 v{T0}, 31, v{X1}")
    a(f"v_lshl_add_u32 v{T0}, v{X3}, 5, v{T0}")
    a(f"v_lshlrev_b32 v{T1}, 4, v{X2}")
    a(f"v_lshrrev_b32 v{T2}, 1, v{X0}")
    a(f"v_lshl_add_u32 v{T1}, v{T2}, 3, v{T1}")
    a(f"v_lshrrev_b32 v{T2}, 5, v{X1}")
    a(f"v_lshl_add_u32 v{T1}, v{T2}, 2, v{T1}")
    a(f"v_and_b32 v{T2}, 1, v{X0}")
    a(f"v_lshl_add_u32 v{T1}, v{T2}, 1, v{T1}")
    a(f"v_mul_u32_u24 v{T1}, v{T1}, v{T0}")
    a(f"v_add_u32 v{T2}, v{T1}, v{T0}")
    a(f"v_and_b32 v{T1}, 63, v{T1}")
    a(f"v_and_b32 v{T2}, 63, v{T2}")
    a(f"v_cvt_f32_u32 v{T1}, v{T1}")
    a(f"v_cvt_f32_u32 v{T2}, v{T2}")
    a(f"v_mul_f32 v{T1}, {f2u(1/64.)}, v{T1}")
    a(f"v_mul_f32 v{T2}, {f2u(1/64.)}, v{T2}")
    a(f"v_lshrrev_b32 v{X3}, 11, v{I}")
    a(f"v_cvt_f32_u32 v{X3}, v{X3}")
    a(f"v_fmamk_f32 v{T1}, v{X3}, {f2u(-0.25)}, v{T1}")
    a(f"v_fmamk_f32 v{T2}, v{X3}, {f2u(-0.25)}, v{T2}")
    a(f"v_cos_f32 v{T1}, v{T1}")
    a(f"v_cos_f32 v{T2}, v{T2}")
    a(f"v_mul_f32 v{T1}, {f2u(0.125)}, v{T1}")
    a(f"v_mul_f32 v{T2}, {f2u(0.125)}, v{T2}")
    a(f"v_cvt_pk_f16_f32 v{T1}, v{T1}, v{T2}")
    a(f"v_lshlrev_b32 v{T0}, 2, v{I}")
    a(f"s_mov_b32 s38, {WS_TB+0x2000}")
    a(f"buffer_store_dword v{T1}, v{T0}, s[24:27], s38 offen")
    a("s_branch K1_TABDONE")
    a.label("K1_TTW1")
    a("s_cmp_ge_u32 s2, 224")
    a("s_cbranch_scc1 K1_TTW2")
    a(f"v_subrev_u32 v{I}, 6144, v{I}")
    a(f"v_bfe_u32 v{X0}, v{I}, 6, 3")
    a(f"v_bfe_u32 v{X1}, v{I}, 9, 1")
    a(f"v_bfe_u32 v{X2}, v{I}, 10, 1")
    a(f"v_bfe_u32 v{T0}, v1, 1, 4")
    a(f"v_lshl_add_u32 v{T0}, v{X1}, 4, v{T0}")
    a(f"v_lshlrev_b32 v{T1}, 5, v{X2}")
    a(f"v_lshrrev_b32 v{T2}, 1, v{X0}")
    a(f"v_lshl_add_u32 v{T1}, v{T2}, 3, v{T1}")
    a(f"v_lshl_add_u32 v{T1}, v{H}, 2, v{T1}")
    a(f"v_and_b32 v{T2}, 1, v{X0}")
    a(f"v_lshl_add_u32 v{T1}, v{T2}, 1, v{T1}")
    a(f"v_mul_u32_u24 v{T1}, v{T1}, v{T0}")
    a(f"v_add_u32 v{T2}, v{T1}, v{T0}")
    a(f"v_cvt_f32_u32 v{T1}, v{T1}")
    a(f"v_cvt_f32_u32 v{T2}, v{T2}")
    a(f"v_mul_f32 v{T1}, {f2u(1/2048.)}, v{T1}")
    a(f"v_mul_f32 v{T2}, {f2u(1/2048.)}, v{T2}")
    a(f"v_cos_f32 v100, v{T1}")
    a(f"v_sin_f32 v101, v{T1}")
    a(f"v_cos_f32 v102, v{T2}")
    a(f"v_sin_f32 v103, v{T2}")
    a(f"v_lshlrev_b32 v{X0}, 31, v1")
    a(f"v_xor_b32 v101, v101, v{X0}")
    a(f"v_xor_b32 v103, v103, v{X0}")
    a(f"v_lshlrev_b32 v{T0}, 4, v{I}")
    a(f"s_mov_b32 s38, {WS_TB+0x6000}")
    a(f"buffer_store_dwordx4 v[100:103], v{T0}, s[24:27], s38 offen")
    a("s_branch K1_TABDONE")
    a.label("K1_TTW2")
    a("s_cmp_ge_u32 s2, 228")
    a("s_cbranch_scc1 K1_TABDONE")
    a(f"v_subrev_u32 v{I}, 8192, v{I}")
    a(f"v_bfe_u32 v{X0}, v{I}, 6, 2")
    a(f"v_bfe_u32 v{X1}, v{I}, 8, 1")
    a(f"v_bfe_u32 v{X2}, v{I}, 9, 1")
    a(f"v_lshl_add_u32 v{T0}, v{X1}, 5, v{L5}")
    a(f"v_lshlrev_b32 v{T1}, 4, v{X2}")
    a(f"v_lshl_add_u32 v{T1}, v{X0}, 2, v{T1}")
    a(f"v_lshl_add_u32 v{T1}, v{H}, 1, v{T1}")
    a(f"v_mul_u32_u24 v{T1}, v{T1}, v{T0}")
    a(f"v_add_u32 v{T2}, v{T1}, v{T0}")
    a(f"v_cvt_f32_u32 v{T1}, v{T1}")
    a(f"v_cvt_f32_u32 v{T2}, v{T2}")
    a(f"v_mul_f32 v{T1}, {f2u(1/2048.)}, v{T1}")
    a(f"v_mul_f32 v{T2}, {f2u(1/2048.)}, v{T2}")
    a(f"v_cos_f32 v100, v{T1}")
    a(f"v_sin_f32 v101, v{T1}")
    a(f"v_cos_f32 v102, v{T2}")
    a(f"v_sin_f32 v103, v{T2}")
    a(f"v_lshlrev_b32 v{T0}, 4, v{I}")
    a(f"s_mov_b32 s38, {WS_TB+0xE000}")
    a(f"buffer_store_dwordx4 v[100:103], v{T0}, s[24:27], s38 offen")
    a.label("K1_TABDONE")
    st(3)
    a("s_waitcnt vmcnt(0)")
    a("s_cmp_ge_u32 s3, 5")
    a("s_cbranch_scc1 K1_LN")
    a("v_cmp_gt_u32 vcc, 289, v0")
    a("s_and_saveexec_b64 s[36:37], vcc")
    for i in range(8):
        a(f"v_lshlrev_b32 v{WR+i}, 16, v{WR+i}")
        a(f"v_lshlrev_b32 v{WI+i}, 16, v{WI+i}")
    for i in range(8):
        a(f"v_cvt_pk_f16_f32 v{WR+i}, v{WR+i}, v{WI+i}")
    a("s_lshr_b32 s38, s32, 3")
    a("s_lshl_b32 s38, s38, 4")
    a("s_add_u32 s38, s38, s33")
    a("s_lshl_b32 s38, s38, 8")
    a("s_and_b32 s39, s32, 7")
    a("s_lshl_b32 s39, s39, 5")
    a("s_add_u32 s38, s38, s39")
    a(f"s_add_u32 s38, s38, {WS_WT}")
    a("v_lshlrev_b32 v5, 13, v0")
    a(f"buffer_store_dwordx4 v[{WR}:{WR+3}], v5, s[24:27], s38 offen")
    a(f"buffer_store_dwordx4 v[{WR+4}:{WR+7}], v5, s[24:27], s38 offen offset:16")
    a("s_mov_b64 exec, s[36:37]")
    a.label("K1_LN")
    st(4)
    PITCH = 336
    XN, HH, XF, TMP = 40, 46, 52, 64
    a("v_cmp_gt_u32 vcc, 32, v1")
    a(f"v_cndmask_b32 v{TMP+6}, 0, 1.0, vcc")
    a(f"v_mov_b32 v{TMP+7}, v{TMP+6}")
    layernorm(a, XD, XN, XF, TMP)
    for j in range(5):
        a(f"v_lshlrev_b32 v{XF+2*j}, 16, v{XN+j}")
        a(f"v_and_b32 v{XF+2*j+1}, 0xffff0000, v{XN+j}")
    PK = 84
    for rs in range(2):
        for jj in range(2):
            a(f"v_cvt_pk_f16_f32 v{PK+4*rs+jj}, v{XF+2*(2*jj)+rs}, v{XF+2*(2*jj+1)+rs}")
        a(f"v_cvt_pk_f16_f32 v{PK+4*rs+2}, v{XF+8+rs}, 0")
    a("s_lshl_b32 s38, s3, 2")
    a("v_and_b32 v4, 1, v1")
    a("v_lshlrev_b32 v4, 1, v4")
    a("v_add_u32 v4, s38, v4")
    a(f"v_mul_u32_u24 v4, {PITCH}, v4")
    a("v_lshrrev_b32 v5, 1, v1")
    a("v_lshl_add_u32 v6, v5, 2, v4")
    a("v_lshl_add_u32 v4, v5, 3, v4")
    for rs in range(2):
        a(f"ds_write_b64 v4, v[{PK+4*rs}:{PK+4*rs+1}] offset:{PITCH*rs}")
    a("s_mov_b64 exec, 0xffffffff")
    for rs in range(2):
        a(f"ds_write_b32 v6, v{PK+4*rs+2} offset:{PITCH*rs+256}")
    a("s_mov_b64 exec, -1")
    a("s_waitcnt lgkmcnt(0)")
    a("s_barrier")
    layernorm(a, XN, HH, XF, TMP)
    for j in range(5):
        a(f"v_add_u32 v4, {64*j}, v1")
        a("v_mul_u32_u24 v5, 1366, v4")
        a("v_lshrrev_b32 v5, 16, v5")
        a("v_mul_u32_u24 v6, 48, v5")
        a("v_sub_u32 v6, v4, v6")
        a("v_mul_u32_u24 v5, 393216, v5")
        a("v_lshl_add_u32 v5, v6, 2, v5")
        if j == 4: a("s_mov_b64 exec, 0xffffffff")
        a(f"buffer_store_dword v{HH+j}, v5, s[24:27], s43 offen")
        if j == 4: a("s_mov_b64 exec, -1")
    if stamps:
        st(5); st(6)
        a("s_branch K1_DUMP")
    a("s_endpgm")
    a.label("K1_NOLN")
    if PFPOS == 1:
        prefetch()
    a("s_barrier")
    st(5)
    AF = 100
    AC = 88
    AF = 104
    a("v_and_b32 v6, 15, v1")
    a("v_lshrrev_b32 v7, 4, v1")
    a(f"v_mul_u32_u24 v4, {PITCH}, v6")
    a("v_lshl_add_u32 v4, v7, 4, v4")
    for t5 in range(5):
        a(f"ds_read_b128 v[{AF+4*t5}:{AF+4*t5+3}], v4 offset:{64*t5}")
    a("s_sub_u32 s35, s3, 8")
    a("s_lshl_b32 s35, s35, 4")
    a("v_add_u32 v8, s35, v6")
    a("v_lshlrev_b32 v9, 13, v8")
    a("v_lshl_add_u32 v10, v7, 2, v9")
    a("v_lshlrev_b32 v11, 2, v7")
    a("v_sub_u32 v11, v11, v9")
    a(f"v_add_u32 v11, {288*8192}, v11")
    a("s_lshl_b32 s40, s28, 10")
    a("s_lshl_b32 s39, s29, 5")
    a("s_add_u32 s38, s40, s39")
    a(f"s_add_u32 s38, s38, {WS_Z}")
    a(f"s_add_u32 s39, s38, {144*8192}")
    a(f"s_sub_u32 s40, s38, {144*8192}")
    a("s_waitcnt lgkmcnt(0)")
    def mf(mt):
        for t5 in range(5):
            af = AF + 4 * t5; c = AC + 8 * mt
            src = "0" if t5 == 0 else None
            a(f"v_mfma_f32_16x16x32_f16 v[{c}:{c+3}], v[{af}:{af+3}], v[{BC+4*t5}:{BC+4*t5+3}], " + (src or f"v[{c}:{c+3}]"))
            a(f"v_mfma_f32_16x16x32_f16 v[{c+4}:{c+7}], v[{af}:{af+3}], v[{BS+4*t5}:{BS+4*t5+3}], " + (src or f"v[{c+4}:{c+7}]"))
    mf(0)
    AF2 = 12
    for t5 in range(5):
        a(f"ds_read_b128 v[{AF2+4*t5}:{AF2+4*t5+3}], v4 offset:{16*PITCH+64*t5}")
    a("s_waitcnt lgkmcnt(0)")
    AF = AF2
    mf(1)
    a("v_cmp_gt_u32 vcc, 73, v8")
    a("s_and_saveexec_b64 s[36:37], vcc")
    P = 104
    for mt in range(2):
        C = AC + 8 * mt; S = C + 4
        for r in range(1, 4):
            cr, sr = TW + 2 * (r - 1), TW + 2 * (r - 1) + 1
            a(f"v_mul_f32 v{P+2*r}, v{C+r}, v{cr}")
            a(f"v_fma_f32 v{P+2*r}, -v{S+r}, v{sr}, v{P+2*r}")
            a(f"v_mul_f32 v{P+2*r+1}, v{C+r}, v{sr}")
            a(f"v_fmac_f32 v{P+2*r+1}, v{S+r}, v{cr}")
        Ap, Aq, Bp, Bq, Cp, Cq, Dp, Dq = range(P + 8, P + 16)
        a(f"v_add_f32 v{Ap}, v{C}, v{P+4}")
        a(f"v_add_f32 v{Aq}, v{S}, v{P+5}")
        a(f"v_sub_f32 v{Bp}, v{C}, v{P+4}")
        a(f"v_sub_f32 v{Bq}, v{S}, v{P+5}")
        a(f"v_add_f32 v{Cp}, v{P+2}, v{P+6}")
        a(f"v_add_f32 v{Cq}, v{P+3}, v{P+7}")
        a(f"v_sub_f32 v{Dp}, v{P+2}, v{P+6}")
        a(f"v_sub_f32 v{Dq}, v{P+3}, v{P+7}")
        o = P + 16 + 0
        o = 32 + 4 * mt
        a(f"v_add_f32 v{P}, v{Bp}, v{Dq}")
        a(f"v_sub_f32 v{P+1}, v{Bq}, v{Dp}")
        a(f"v_cvt_pk_f16_f32 v{o+3}, v{P}, v{P+1}")
        a(f"v_sub_f32 v{P+2}, v{Ap}, v{Cp}")
        a(f"v_sub_f32 v{P+3}, v{Aq}, v{Cq}")
        a(f"buffer_store_dword v{o+3}, v11, s[24:27], s40 offen offset:{16*mt}")
        a(f"v_cvt_pk_f16_f32 v{o+1}, v{P+2}, v{P+3}")
        a(f"v_sub_f32 v{P}, v{Bp}, v{Dq}")
        a(f"v_add_f32 v{P+1}, v{Bq}, v{Dp}")
        a(f"buffer_store_dword v{o+1}, v11, s[24:27], s38 offen offset:{16*mt}")
        a(f"v_cvt_pk_f16_f32 v{o+2}, v{P}, -v{P+1}")
        a(f"v_add_f32 v{P+2}, v{Ap}, v{Cp}")
        a(f"v_add_f32 v{P+3}, v{Aq}, v{Cq}")
        a(f"buffer_store_dword v{o+2}, v10, s[24:27], s39 offen offset:{16*mt}")
        a(f"v_cvt_pk_f16_f32 v{o}, v{P+2}, -v{P+3}")
        a(f"buffer_store_dword v{o}, v10, s[24:27], s38 offen offset:{16*mt}")
    if PFPOS == 2:
        a("s_mov_b64 exec, -1")
        prefetch()
    st(6)
    if stamps:
        a.label("K1_DUMP")
        a('s_waitcnt vmcnt(0) lgkmcnt(0)')
        a('s_memrealtime s[74:75]')
        a('s_waitcnt lgkmcnt(0)')
        a('s_mov_b64 exec, 1')
        a('s_lshl_b32 s38, s2, 4')
        a('s_add_u32 s38, s38, s3')
        a('s_lshl_b32 s38, s38, 6')
        a('s_add_u32 s38, s38, 0x1000000')
        a('s_mov_b32 s26, 0x2000000')
        a('v_mov_b32 v1, 0')
        for i in range(8):
            a(f's_mov_b32 s39, s{60+2*i}')
            a(f'v_mov_b32 v2, s39')
            a(f'buffer_store_dword v2, v1, s[24:27], s38 offen offset:{4*i}')
    a.label("K1_END")
    a("s_endpgm")
    return insert_hazard_nops(a.lines), 128
```

```python
from asmlib import *
from k1 import PF_ROWS, f2u, WS_H, WS_Z, WS_WT, WS_UX, WS_YT, WS_TB, WS_END, UXP
import os
NTW = ' nt' if os.environ.get('NTW') else ''
W2PF = int(os.environ.get('W2PF', 0))
FPF = int(os.environ.get('FPF', 0))
R = 11
STG = 14336
LDS = R * STG
NST = 64

STAMPS = [False]
def st(a, i):
    if STAMPS[0]: a(f's_memrealtime s[{70+2*i}:{71+2*i}]')
def dump(a, n, wreg):
    if STAMPS[0]:
        a('s_waitcnt vmcnt(0) lgkmcnt(0)')
        a('s_mov_b64 exec, 1')
        a('s_lshl_b32 s56, s2, 3')
        a(f's_add_u32 s56, s56, {wreg}')
        a('s_lshl_b32 s56, s56, 6')
        a('s_add_u32 s56, s56, 0x1100000')
        a('s_mov_b32 s26, 0x2000000')
        a('v_mov_b32 v1, 0')
        for i in range(n):
            a(f'v_mov_b32 v2, s{70+2*i}')
            a(f'buffer_store_dword v2, v1, s[24:27], s56 offen offset:{4*i}')
def gemm1(a):
    a("s_mul_i32 s30, s29, 10923")
    a("s_lshr_b32 s30, s30, 16")
    a("s_mul_i32 s31, s30, 6")
    a("s_sub_u32 s31, s29, s31")
    a("s_mul_i32 s32, s28, 5")
    a("s_lshl_b32 s33, s28, 2")
    a("s_add_u32 s33, s33, 4")
    a("s_cmp_lt_u32 s28, 4")
    a("s_cselect_b32 s29, s32, s33")
    a("s_add_u32 s29, s29, s30")
    a("s_mov_b32 s30, s31")
    a("s_lshl_b32 s31, s29, 8")
    a("s_mul_i32 s32, s30, 192")
    a("s_cmp_lt_u32 s3, 4")
    a("s_cbranch_scc1 G1_CONS")
    a("s_sub_u32 s3, s3, 4")
    VW, VH = 2, 4
    a("v_lshrrev_b32 v10, 4, v1")
    a("v_and_b32 v11, 15, v1")
    a("v_lshlrev_b32 v12, 2, v10")
    a("v_xor_b32 v11, v11, v12")
    a(f"v_mul_u32_u24 v{VW}, 9216, v10")
    a(f"v_lshl_add_u32 v{VW}, v11, 4, v{VW}")
    a(f"v_add_u32 v{VW+1}, {4*9216-1024}, v{VW}")
    a(f"v_lshlrev_b32 v{VH}, 4, v1")
    a(f"v_mov_b32 v{VH+1}, v{VH}")
    a(f"s_mul_i32 s33, s3, {8*9216}")
    a("s_add_u32 s33, s33, s31")
    a(f"s_mul_i32 s34, s3, 1536")
    a(f"s_mul_i32 s32, s30, 393216")
    a("s_add_u32 s34, s34, s32")
    a("s_lshl_b32 s35, s3, 11")
    a("s_mul_i32 s36, s3, 1536")
    a("s_add_u32 s36, s36, 8192")
    a("s_mov_b32 s37, 0")
    def dma():
        a("s_add_u32 s38, s37, s35")
        a("s_mov_b32 m0, s38")
        a("s_add_u32 s38, s37, s36")
        for i in range(2):
            a(f"buffer_load_dwordx4 v{VW+i}, s[12:15], s33 offen offset:{1024*i}" + NTW + " lds")
        a("s_mov_b32 m0, s38")
        a(f"s_add_u32 s33, s33, {32*9216}")
        a(f"buffer_load_dwordx4 v{VH}, s[16:19], s34 offen lds")
        a("s_mov_b64 exec, 0xffffffff")
        a(f"buffer_load_dwordx4 v{VH+1}, s[16:19], s34 offen offset:1024 lds")
        a("s_mov_b64 exec, -1")
        a(f"s_add_u32 s34, s34, {32*192}")
        a(f"s_add_u32 s37, s37, {STG}")
        a(f"s_cmp_ge_u32 s37, {LDS}")
        a("s_cselect_b32 s37, 0, s37")
    for i in range(R - 1): dma()
    a(f"s_waitcnt vmcnt({4*(R-3)})")
    a("s_barrier")
    a("s_mov_b32 s44, 0")
    a.label("G1_LLOOP")
    a(f"s_waitcnt vmcnt({4*(R-4)})")
    a("s_barrier")
    dma()
    a("s_add_u32 s44, s44, 1")
    a(f"s_cmp_lt_u32 s44, {NST-(R-1)}")
    a("s_cbranch_scc1 G1_LLOOP")
    for t in range(R - 1):
        a(f"s_waitcnt vmcnt({max(0, 4*(R-4-t))})")
        a("s_barrier")
    a("s_waitcnt vmcnt(0)")
    a("s_barrier")
    a("s_add_u32 s3, s3, 4")
    a("s_branch G1_EPI")
    a.label("G1_CONS")
    VA0, VA1, VB, CA0, CA1, CB = 2, 3, 4, 5, 6, 7
    a("s_and_b32 s40, s3, 1")
    a("s_lshr_b32 s41, s3, 1")
    a("v_lshrrev_b32 v10, 5, v1")
    a("v_bfe_u32 v11, v1, 2, 2")
    a("v_lshl_add_u32 v10, v10, 3, v11")
    a("s_lshl_b32 s42, s40, 4")
    a("v_add_u32 v10, s42, v10")
    a("v_bfe_u32 v12, v1, 4, 1")
    a("v_bfe_u32 v13, v1, 1, 1")
    a("v_lshl_add_u32 v12, v12, 1, v13")
    a("v_and_b32 v13, 1, v1")
    a("v_lshlrev_b32 v13, 3, v13")
    a("v_lshl_add_u32 v13, v12, 4, v13")
    a("s_lshl_b32 s42, s41, 1")
    a("v_xor_b32 v14, s42, v11")
    a(f"v_lshlrev_b32 v{VA0}, 8, v10")
    a(f"v_lshl_add_u32 v{VA0}, v14, 6, v{VA0}")
    a(f"v_add_u32 v{VA0}, v{VA0}, v13")
    a(f"v_xor_b32 v{VA1}, 64, v{VA0}")
    a(f"v_mul_u32_u24 v{VB}, 192, v10")
    a(f"v_add_u32 v{VB}, v{VB}, v13")
    a(f"v_add_u32 v{VB}, 8192, v{VB}")
    ACC = 16
    FR = [112, 132, 152]
    def read_list(setn):
        f = FR[setn]; L = []
        for mi, ca in enumerate((CA0, CA1)):
            L.append(f"ds_read_b64_tr_b16 v[{f+4*mi}:{f+4*mi+1}], v{ca}")
            L.append(f"ds_read_b64_tr_b16 v[{f+4*mi+2}:{f+4*mi+3}], v{ca} offset:1024")
        for ni in range(3):
            L.append(f"ds_read_b64_tr_b16 v[{f+8+4*ni}:{f+8+4*ni+1}], v{CB} offset:{ni*64}")
            L.append(f"ds_read_b64_tr_b16 v[{f+8+4*ni+2}:{f+8+4*ni+3}], v{CB} offset:{ni*64+768}")
        return L
    def mfma_list(setn):
        f = FR[setn]; L = []
        for mi in range(2):
            for ni in range(3):
                c = ACC + (mi * 3 + ni) * 16
                L.append(f"v_mfma_f32_32x32x16_bf16 v[{c}:{c+15}], v[{f+4*mi}:{f+4*mi+3}], v[{f+8+4*ni}:{f+8+4*ni+3}], v[{c}:{c+15}]")
        return L
    def addrs():
        a(f"v_add_u32 v{CA0}, s43, v{VA0}")
        a(f"v_add_u32 v{CA1}, s43, v{VA1}")
        a(f"v_add_u32 v{CB}, s43, v{VB}")
    if PF_ROWS < 2048 and not NTW:
        a("s_and_b32 s46, s2, 7")
        a("s_mul_i32 s46, s46, 9")
        a("s_lshr_b32 s46, s46, 1")
        a("s_lshl_b32 s46, s46, 8")
        a("s_lshr_b32 s47, s2, 3")
        RP = (2048 - PF_ROWS + 26) // 27
        a(f"s_mul_i32 s47, s47, {RP*9216}")
        a("s_add_u32 s46, s46, s47")
        a(f"s_add_u32 s46, s46, {PF_ROWS*9216}")
        a("v_lshrrev_b32 v10, 3, v0")
        a("v_mul_u32_u24 v10, 9216, v10")
        a("v_and_b32 v11, 7, v0")
        a("v_lshl_add_u32 v10, v11, 6, v10")
        for p in range((RP + 31) // 32):
            for i in range(3):
                a(f"buffer_load_dword v{200+i}, v10, s[12:15], s46 offen offset:{512*i}")
            a(f"s_add_u32 s46, s46, {32*9216}")
    if W2PF:
        a("s_load_dwordx2 s[52:53], s[0:1], 48")
        a("v_lshlrev_b32 v203, 6, v1")
        a("s_mul_i32 s50, s2, 90112")
        a("s_waitcnt lgkmcnt(0)")
        a("s_mov_b32 s54, 18874368")
        a("s_mov_b32 s55, 0x00020000")
        a("s_mov_b32 s51, 0")
    for i in range(96): a(f"v_mov_b32 v{ACC+i}, 0")
    def adv():
        a(f"s_add_u32 s43, s43, {STG}")
        a(f"s_cmp_ge_u32 s43, {LDS}")
        a("s_cselect_b32 s43, 0, s43")
        addrs()
    a("s_barrier")
    a("s_mov_b32 s43, 0")
    addrs()
    for x in read_list(0): a(x)
    adv()
    for x in read_list(1): a(x)
    st(a, 1)
    def it(par):
        adv()
        a("s_waitcnt lgkmcnt(10)")
        a("s_barrier")
        rl = read_list((par + 2) % 3); ml = mfma_list(par); ri = 0
        for i, mline in enumerate(ml):
            a(mline)
            want = min(len(rl), (i + 1) * 2)
            while ri < want:
                a(rl[ri]); ri += 1
    a("s_mov_b32 s44, 0")
    a.label("G1_LOOP")
    if W2PF:
        a("s_cmp_lg_u32 s3, 0")
        a("s_cbranch_scc1 G1_NPF")
        a("s_cmp_ge_u32 s51, 22")
        a("s_cbranch_scc1 G1_NPF")
        for q in range(W2PF):
            a("buffer_load_dword v204, v203, s[52:55], s50 offen")
            a("s_add_u32 s50, s50, 4096")
        a(f"s_add_u32 s51, s51, {W2PF}")
        a.label("G1_NPF")
    it(0); it(1); it(2)
    a("s_add_u32 s44, s44, 1")
    a(f"s_cmp_lt_u32 s44, {NST//3}")
    a("s_cbranch_scc1 G1_LOOP")
    it(0)
    a("s_waitcnt lgkmcnt(0)")
    a("s_barrier")
    st(a, 2)
    a("v_lshlrev_b32 v2, 4, v1")
    a("s_mul_i32 s45, s3, 24576")
    a("v_add_u32 v3, s45, v2")
    for i in range(24):
        a(f"ds_write_b128 v3, v[{ACC+4*i}:{ACC+4*i+3}] offset:{1024*i}")
    a.label("G1_EPI")
    a("s_lshr_b32 s41, s3, 2")
    a("s_bfe_u32 s40, s3, 0x10001")
    a("s_and_b32 s42, s3, 1")
    a("s_lshl_b32 s45, s41, 7")
    a("s_lshl_b32 s46, s40, 6")
    a("s_add_u32 s45, s45, s46")
    a("s_lshl_b32 s46, s42, 5")
    a("s_add_u32 s45, s45, s46")
    a("s_add_u32 s45, s45, s31")
    a("v_lshrrev_b32 v5, 5, v1")
    a("v_lshlrev_b32 v5, 3, v5")
    B1R = 176
    for gg in range(2):
        a(f"buffer_load_dwordx2 v[{B1R+2*gg}:{B1R+2*gg+1}], v5, s[20:23], s45 offen offset:{16*gg}")
    a("v_lshlrev_b32 v2, 4, v1")
    a("s_mul_i32 s46, s41, 49152")
    a("s_mul_i32 s47, s40, 12288")
    a("s_add_u32 s46, s46, s47")
    a("s_lshl_b32 s47, s42, 11")
    a("s_add_u32 s46, s46, s47")
    a("v_add_u32 v4, s46, v2")
    a("s_waitcnt lgkmcnt(0)")
    a("s_barrier")
    P0, P1 = 16, 40
    for ni in range(3):
        for i in range(2):
            a(f"ds_read_b128 v[{P0+8*ni+4*i}:{P0+8*ni+4*i+3}], v4 offset:{ni*4096+i*1024}")
            a(f"ds_read_b128 v[{P1+8*ni+4*i}:{P1+8*ni+4*i+3}], v4 offset:{24576+ni*4096+i*1024}")
    a("v_and_b32 v6, 31, v1")
    a(f"v_mul_u32_u24 v6, {UXP}, v6")
    a("v_lshrrev_b32 v7, 5, v1")
    a("v_lshl_add_u32 v6, v7, 4, v6")
    a(f"s_mul_i32 s46, s30, {96*UXP}")
    a("s_add_u32 s46, s46, s45")
    a(f"s_add_u32 s46, s46, {WS_UX+1152}")
    c1 = f2u(0.044715); c2 = f2u(-2 * 0.7978845608028654 * 1.4426950408889634)
    a(f"v_mov_b32 v8, {c1}")
    a(f"v_mov_b32 v9, {c1}")
    a(f"v_mov_b32 v10, {c2}")
    a(f"v_mov_b32 v11, {c2}")
    a("v_mov_b32 v12, 1.0")
    a("v_mov_b32 v13, 1.0")
    a("s_waitcnt vmcnt(0)")
    BF = 64
    for gg in range(2):
        a(f"v_lshlrev_b32 v{BF+4*gg}, 16, v{B1R+2*gg}")
        a(f"v_and_b32 v{BF+4*gg+1}, 0xffff0000, v{B1R+2*gg}")
        a(f"v_lshlrev_b32 v{BF+4*gg+2}, 16, v{B1R+2*gg+1}")
        a(f"v_and_b32 v{BF+4*gg+3}, 0xffff0000, v{B1R+2*gg+1}")
    a("s_waitcnt lgkmcnt(0)")
    for i in range(12):
        a(f"v_pk_add_f32 v[{P0+2*i}:{P0+2*i+1}], v[{P0+2*i}:{P0+2*i+1}], v[{P1+2*i}:{P1+2*i+1}]")
    T = 80; O = 100
    def pk(op, d, x, y, z=None):
        if z is None: a(f"{op} v[{d}:{d+1}], v[{x}:{x+1}], v[{y}:{y+1}]")
        else: a(f"{op} v[{d}:{d+1}], v[{x}:{x+1}], v[{y}:{y+1}], v[{z}:{z+1}]")
    for ni in range(3):
        o = O + 4 * ni
        c = P0 + 8 * ni
        for p in range(4): a(f"v_cvt_pk_bf16_f32 v{T+p}, v{c+2*p}, v{c+2*p+1}")
        for p in range(4):
            a(f"v_lshlrev_b32 v{c+2*p}, 16, v{T+p}")
            a(f"v_and_b32 v{c+2*p+1}, 0xffff0000, v{T+p}")
        for p in range(4): pk("v_pk_add_f32", c + 2*p, c + 2*p, BF + 2*p)
        for p in range(4): a(f"v_cvt_pk_bf16_f32 v{T+p}, v{c+2*p}, v{c+2*p+1}")
        for p in range(4):
            a(f"v_lshlrev_b32 v{c+2*p}, 16, v{T+p}")
            a(f"v_and_b32 v{c+2*p+1}, 0xffff0000, v{T+p}")
        for p in range(4): pk("v_pk_mul_f32", T + 2*p, c + 2*p, c + 2*p)
        for p in range(4): pk("v_pk_fma_f32", T + 2*p, T + 2*p, 8, 12)
        for p in range(4): pk("v_pk_mul_f32", T + 8 + 2*p, c + 2*p, 10)
        for p in range(4): pk("v_pk_mul_f32", T + 2*p, T + 2*p, T + 8 + 2*p)
        for p in range(8): a(f"v_exp_f32 v{T+p}, v{T+p}")
        for p in range(4): pk("v_pk_add_f32", T + 2*p, T + 2*p, 12)
        for p in range(8): a(f"v_rcp_f32 v{T+p}, v{T+p}")
        for p in range(4): pk("v_pk_mul_f32", c + 2*p, c + 2*p, T + 2*p)
        for p in range(4): a(f"v_cvt_pk_bf16_f32 v{o+p}, v{c+2*p}, v{c+2*p+1}")
        a(f"v_permlane32_swap_b32 v{o}, v{o+2}")
        a(f"v_permlane32_swap_b32 v{o+1}, v{o+3}")
        a(f"s_add_u32 s49, s46, {ni*32*UXP}")
        a(f"buffer_store_dwordx4 v[{o}:{o+3}], v6, s[24:27], s49 offen")
    st(a, 3)
    dump(a, 4, "s3")
    a("s_endpgm")

def fft(a):
    B1F, F64C, F64S, XIN, ACC, YP, TMP = 16, 48, 80, 112, 144, 208, 240
    LW = 49152
    a("s_lshl_b32 s31, s28, 1")
    a("s_lshl_b32 s32, s28, 3")
    a("s_sub_u32 s32, s32, 24")
    a("s_cmp_lt_u32 s28, 4")
    a("s_cselect_b32 s31, s31, s32")
    a("s_sub_u32 s29, s29, s30")
    a("s_add_u32 s28, s31, s29")
    a("s_lshl_b32 s28, s28, 3")
    a("s_add_u32 s28, s28, s3")
    a("s_min_u32 s29, s28, 288")
    a("v_lshlrev_b32 v2, 4, v1")
    a("s_mul_i32 s30, s3, 6144")
    for i in range(6):
        a(f"s_add_u32 s31, s30, {1024*i}")
        a("s_mov_b32 m0, s31")
        a(f"s_add_u32 s32, s31, {WS_TB+0x6000}")
        a("buffer_load_dwordx4 v2, s[24:27], s32 offen lds")
    a("s_lshl_b32 s33, s29, 13")
    a("s_lshl_b32 s34, s3, 13")
    a(f"s_add_u32 s34, s34, {LW}")
    for i in range(8):
        a(f"s_add_u32 s31, s34, {1024*i}")
        a("s_mov_b32 m0, s31")
        a(f"s_add_u32 s32, s33, {WS_WT+1024*i}")
        a("buffer_load_dwordx4 v2, s[24:27], s32 offen lds")
    a("v_lshrrev_b32 v3, 5, v1")
    a("v_lshlrev_b32 v3, 10, v3")
    a("v_and_b32 v4, 31, v1")
    a("v_lshl_add_u32 v3, v4, 4, v3")
    for t in range(4):
        a(f"s_add_u32 s35, s33, {WS_Z+2048*t}")
        for mt in range(2):
            f = XIN + (mt * 4 + t) * 4
            a(f"buffer_load_dwordx4 v[{f}:{f+3}], v3, s[24:27], s35 offen offset:{512*mt}")
    for i in range(24):
        if i % 4 == 0: a(f"s_mov_b32 s35, {WS_TB+1024*i}")
        f = B1F + 4 * i
        a(f"buffer_load_dwordx4 v[{f}:{f+3}], v2, s[24:27], s35 offen offset:{1024*(i%4)}")
    SG, SGN = 5, 6
    a("v_and_b32 v7, 1, v1")
    a("v_lshlrev_b32 v7, 31, v7")
    a(f"v_xor_b32 v{SG}, 1.0, v7")
    a(f"v_xor_b32 v{SGN}, -1.0, v7")
    a("v_lshrrev_b32 v8, 5, v1")
    a("v_bfe_u32 v9, v1, 1, 4")
    a("v_lshl_add_u32 v8, v8, 4, v9")
    a("v_lshlrev_b32 v8, 4, v8")
    a("v_add_u32 v8, s34, v8")
    a("s_waitcnt vmcnt(0)")
    a("s_barrier")
    st(a, 1)
    a("s_cmp_gt_u32 s28, 288")
    a("s_cbranch_scc1 K2_END")
    def zero(base, n):
        for i in range(n): a(f"v_mov_b32 v{base+i}, 0")
    def mf(d, x, y):
        a(f"v_mfma_f32_32x32x16_f16 v[{d}:{d+15}], v[{x}:{x+3}], v[{y}:{y+3}], v[{d}:{d+15}]")
    zero(ACC, 64)
    for mt in range(2):
        for nt in range(2):
            for t in range(4):
                mf(ACC + (mt * 2 + nt) * 16, XIN + (mt * 4 + t) * 4, B1F + (nt * 4 + t) * 4)
    for mt in range(2):
        for nt in range(2):
            tile = mt * 2 + nt; D = ACC + tile * 16
            for half in range(2):
                for jp in range(4 * half, 4 * half + 4):
                    a(f"ds_read_b128 v[{TMP+4*(jp&3)}:{TMP+4*(jp&3)+3}], v2 offset:{(tile*8+jp)*1024}")
                a("s_waitcnt lgkmcnt(0)")
                for jp in range(4 * half, 4 * half + 4):
                    w = TMP + 4 * (jp & 3)
                    for e in range(2):
                        j = 2 * jp + e
                        a(f"v_mul_f32 v{w+2*e}, v{D+j}, v{w+2*e}")
                        a(f"v_fmac_f32_dpp v{w+2*e}, v{D+j}, v{w+2*e+1} quad_perm:[1,0,3,2] row_mask:0xf bank_mask:0xf")
                    u = jp >> 2
                    dst = XIN + (nt * 4 + 2 * mt + u) * 4 + (jp & 3)
                    a(f"v_cvt_pk_f16_f32 v{dst}, v{w}, v{w+2}")
    for nt in range(2):
        for mt2 in range(2):
            P = ACC + mt2 * 32; Q = P + 16
            zero(P, 32)
            for ks in range(4):
                mf(P, F64C + (mt2 * 4 + ks) * 4, XIN + (nt * 4 + ks) * 4)
            for ks in range(4):
                mf(Q, F64S + (mt2 * 4 + ks) * 4, XIN + (nt * 4 + ks) * 4)
            for g in range(4):
                a(f"ds_read_b128 v[{TMP+4*g}:{TMP+4*g+3}], v8 offset:{(nt*2+mt2)*2048+g*512}")
            for j in range(16):
                a(f"v_fmac_f32_dpp v{P+j}, v{Q+j}, v{SG} quad_perm:[1,0,3,2] row_mask:0xf bank_mask:0xf")
            a("s_waitcnt lgkmcnt(0)")
            for j in range(16):
                w = TMP + j
                a(f"v_mul_f32_dpp v{Q+j}, v{P+j}, v{SGN} quad_perm:[1,0,3,2] row_mask:0xf bank_mask:0xf")
                a(f"v_fma_mix_f32 v{Q+j}, v{Q+j}, v{w}, 0 op_sel:[0,1,0] op_sel_hi:[0,1,0]")
                a(f"v_fma_mix_f32 v{P+j}, v{P+j}, v{w}, v{Q+j} op_sel:[0,0,0] op_sel_hi:[0,1,0]")
            for jp in range(8):
                dst = YP + (nt * 4 + 2 * mt2 + (jp >> 2)) * 4 + (jp & 3)
                a(f"v_cvt_pk_f16_f32 v{dst}, v{P+2*jp}, v{P+2*jp+1}")
    for mt3 in range(2):
        for nt3 in range(2):
            P = ACC + nt3 * 32; Q = P + 16
            zero(P, 32)
            for ks in range(4):
                mf(P, YP + (mt3 * 4 + ks) * 4, F64C + (nt3 * 4 + ks) * 4)
            for ks in range(4):
                mf(Q, YP + (mt3 * 4 + ks) * 4, F64S + (nt3 * 4 + ks) * 4)
            tile = mt3 * 2 + nt3
            for jq in range(4):
                a(f"ds_read_b128 v[{TMP+4*jq}:{TMP+4*jq+3}], v2 offset:{32768+(tile*4+jq)*1024}")
            for pp in range(8):
                j = 2 * pp
                a(f"v_sub_f32 v{P+j}, v{P+j}, v{Q+j+1}")
                a(f"v_add_f32 v{P+j+1}, v{P+j+1}, v{Q+j}")
            a("s_waitcnt lgkmcnt(0)")
            for pp in range(8):
                j = 2 * pp; c = TMP + 2 * pp; s = c + 1
                a(f"v_mul_f32 v{Q+j}, v{P+j}, v{c}")
                a(f"v_fma_f32 v{Q+j}, -v{P+j+1}, v{s}, v{Q+j}")
                a(f"v_mul_f32 v{Q+j+1}, v{P+j}, v{s}")
                a(f"v_fmac_f32 v{Q+j+1}, v{P+j+1}, v{c}")
                dst = XIN + (nt3 * 4 + 2 * mt3 + (pp >> 2)) * 4 + (pp & 3)
                a(f"v_cvt_pk_f16_f32 v{dst}, v{Q+j}, -v{Q+j+1}")
    zero(ACC, 64)
    for mt4 in range(2):
        for nt4 in range(2):
            for ks in range(4):
                mf(ACC + (mt4 * 2 + nt4) * 16, XIN + (mt4 * 4 + ks) * 4, B1F + (nt4 * 4 + ks) * 4)
    a("v_bfe_u32 v9, v1, 1, 4")
    a("v_lshlrev_b32 v9, 7, v9")
    a("v_lshrrev_b32 v10, 5, v1")
    a("v_lshl_add_u32 v9, v10, 4, v9")
    a("v_and_b32 v10, 1, v1")
    a("v_lshl_add_u32 v9, v10, 12, v9")
    a("s_lshl_b32 s36, s28, 13")
    a("s_cmp_eq_u32 s28, 288")
    a("s_cselect_b32 s36, 4096, s36")
    a(f"s_add_u32 s36, s36, {WS_YT}")
    a("s_cmp_eq_u32 s28, 0")
    a("s_cbranch_scc1 F_MASK")
    a("s_cmp_lg_u32 s28, 288")
    a("s_cbranch_scc1 F_NOMASK")
    a.label("F_MASK")
    a("s_mov_b32 exec_lo, 0x55555555")
    a("s_mov_b32 exec_hi, 0x55555555")
    a.label("F_NOMASK")
    O = XIN
    n = 0
    for mt4 in range(2):
        for nt4 in range(2):
            D = ACC + (mt4 * 2 + nt4) * 16
            for gam in range(2):
                o = O + 4 * n; n += 1
                for gg in range(2):
                    g = 2 * gam + gg
                    a(f"v_cvt_pk_f16_f32 v{o+2*gg}, v{D+4*g}, v{D+4*g+1}")
                    a(f"v_cvt_pk_f16_f32 v{o+2*gg+1}, v{D+4*g+2}, v{D+4*g+3}")
    a("s_mov_b64 s[40:41], exec")
    a("s_mov_b64 exec, -1")
    for i in range(8):
        o = O + 4 * i
        a(f"v_permlane32_swap_b32 v{o}, v{o+2}")
        a(f"v_permlane32_swap_b32 v{o+1}, v{o+3}")
    a("s_mov_b64 exec, s[40:41]")
    n = 0
    for mt4 in range(2):
        for nt4 in range(2):
            for gam in range(2):
                o = O + 4 * n; n += 1
                a(f"buffer_store_dwordx4 v[{o}:{o+3}], v9, s[24:27], s36 offen offset:{nt4*2048+mt4*64+gam*32}")
    if FPF:
        a("s_mov_b64 exec, -1")
        a("s_load_dwordx2 s[52:53], s[0:1], 48")
        a("v_lshlrev_b32 v203, 6, v1")
        a(f"s_mul_i32 s50, s28, {FPF*4096}")
        a("s_waitcnt lgkmcnt(0)")
        a("s_mov_b32 s54, 18874368")
        a("s_mov_b32 s55, 0x00020000")
        for q in range(FPF):
            a(f"buffer_load_dword v{204+(q&3)}, v203, s[52:55], s50 offen")
            a("s_add_u32 s50, s50, 4096")
    st(a, 2); st(a, 3)
    dump(a, 4, "s3")

def gen_k2(stamps=False):
    a = Asm()
    STAMPS[0] = stamps
    st(a, 0)
    a("s_cmp_ge_u32 s2, 256")
    a("s_cbranch_scc1 K2_END")
    a("s_load_dwordx4 s[4:7], s[0:1], 32")
    a("s_load_dwordx2 s[8:9], s[0:1], 80")
    a("v_and_b32 v1, 63, v0")
    a("v_lshrrev_b32 v2, 6, v0")
    a("v_readfirstlane_b32 s3, v2")
    a("s_waitcnt lgkmcnt(0)")
    for base, (lo, n) in {12: (4, 2048 * 9216), 16: (8, 2359296), 20: (6, 9216), 24: (8, WS_END)}.items():
        a(f"s_mov_b32 s{base}, s{lo}")
        a(f"s_mov_b32 s{base+1}, s{lo+1}")
        a(f"s_mov_b32 s{base+2}, {n}")
        a(f"s_mov_b32 s{base+3}, 0x00020000")
    a("s_and_b32 s28, s2, 7")
    a("s_lshr_b32 s29, s2, 3")
    a("s_cmp_lt_u32 s28, 4")
    a("s_cselect_b32 s30, 30, 24")
    a("s_cmp_ge_u32 s29, s30")
    a("s_cbranch_scc1 K2_FFT")
    gemm1(a)
    a.label("K2_FFT")
    fft(a)
    a.label("K2_END")
    a("s_endpgm")
    return insert_hazard_nops(a.lines), 256
```

```python
from asmlib import *
from k1 import f2u, WS_H, WS_Z, WS_WT, WS_UX, WS_YT, WS_TB, WS_END, UXP
import os
NTS = ' nt' if os.environ.get('NTS') else ''
MAP48 = bool(int(os.environ.get('MAP48', 0)))
NSH = 4 if MAP48 else 8
PFI = int(os.environ.get('PFI', 16))
R = 9
STG = 17408
LDS = R * STG
BLOCK = 512
NA, NB = 9, 72
PFL = [0]

def gen_k3(stamps=False):
    a = Asm()
    def st(i):
        if stamps:
            a(f's_memtime s[{60+2*i}:{61+2*i}]')
    def rt(i):
        if stamps:
            a(f's_memrealtime s[{60+2*i}:{61+2*i}]')
    def dump(n, wreg):
        if stamps:
            a('s_waitcnt vmcnt(0) lgkmcnt(0)')
            a('s_mov_b64 exec, 1')
            a('s_lshl_b32 s56, s2, 3')
            a(f's_add_u32 s56, s56, {wreg}')
            a('s_lshl_b32 s56, s56, 6')
            a('s_add_u32 s56, s56, 0x1000000')
            a('s_mov_b32 s14, 0x2000000')
            a('v_mov_b32 v1, 0')
            for i in range(n):
                a(f'v_mov_b32 v2, s{60+2*i}')
                a(f'buffer_store_dword v2, v1, s[12:15], s56 offen offset:{4*i}')
    st(0); rt(1)
    a("s_cmp_ge_u32 s2, 256")
    a("s_cbranch_scc1 K3_END")
    a("s_load_dwordx2 s[4:5], s[0:1], 0")
    a("s_load_dwordx4 s[8:11], s[0:1], 48")
    a("s_load_dwordx2 s[6:7], s[0:1], 64")
    a("s_load_dwordx2 s[28:29], s[0:1], 80")
    a("v_and_b32 v1, 63, v0")
    a("v_lshrrev_b32 v2, 6, v0")
    a("v_readfirstlane_b32 s3, v2")
    a("s_and_b32 s36, s2, 7")
    a("s_lshr_b32 s37, s2, 3")
    if MAP48:
        a("s_and_b32 s38, s36, 1")
        a("s_lshl_b32 s38, s38, 2")
        a("s_lshr_b32 s39, s37, 3")
        a("s_add_u32 s38, s38, s39")
        a("s_lshr_b32 s36, s36, 1")
        a("s_lshl_b32 s36, s36, 3")
        a("s_and_b32 s37, s37, 7")
        a("s_add_u32 s36, s36, s37")
        a("s_mov_b32 s37, s38")
    else:
        a("s_lshl_b32 s36, s36, 2")
        a("s_and_b32 s38, s37, 3")
        a("s_add_u32 s36, s36, s38")
        a("s_lshr_b32 s37, s37, 2")
    a("s_lshl_b32 s38, s36, 7")
    a("s_mul_i32 s39, s37, 72")
    a("s_waitcnt lgkmcnt(0)")
    a(f"s_add_u32 s16, s28, {WS_YT}")
    a("s_addc_u32 s17, s29, 0")
    a(f"s_mov_b32 s18, {576*4096}")
    a("s_mov_b32 s19, 0x00020000")
    for base, (lo, n) in {12: (28, WS_END), 20: (4, 2359296), 24: (6, 2359296), 32: (10, 4096)}.items():
        a(f"s_mov_b32 s{base}, s{lo}")
        a(f"s_mov_b32 s{base+1}, s{lo+1}")
        a(f"s_mov_b32 s{base+2}, {n}")
        a(f"s_mov_b32 s{base+3}, 0x00020000")
    a("s_cmp_lt_u32 s3, 4")
    a("s_cbranch_scc1 K3_CONS")
    a("s_sub_u32 s3, s3, 4")
    VU0, VU1, VUQ, VS0, VS1 = 2, 3, 4, 5, 6
    a("v_lshrrev_b32 v7, 3, v1")
    a("v_and_b32 v8, 7, v1")
    a("v_lshrrev_b32 v9, 4, v1")
    a("v_xor_b32 v10, v8, v9")
    a(f"v_mul_u32_u24 v11, {UXP}, v7")
    a(f"v_lshl_add_u32 v{VU0}, v10, 4, v11")
    a("v_xor_b32 v10, 4, v10")
    a(f"v_lshl_add_u32 v{VU1}, v10, 4, v11")
    a(f"v_add_u32 v{VU1}, {8*UXP-1024}, v{VU1}")
    a("v_xor_b32 v10, s3, v8")
    a(f"v_lshl_add_u32 v{VUQ}, v10, 4, v11")
    a("v_bfe_u32 v10, v1, 4, 1")
    a("v_lshlrev_b32 v10, 1, v10")
    a("v_xor_b32 v10, v10, v8")
    a("v_lshlrev_b32 v11, 12, v7")
    a(f"v_lshl_add_u32 v{VS0}, v10, 4, v11")
    a("v_xor_b32 v10, 4, v10")
    a(f"v_lshl_add_u32 v{VS1}, v10, 4, v11")
    a(f"v_add_u32 v{VS1}, {8*4096-1024}, v{VS1}")
    a(f"s_mul_i32 s40, s39, {UXP}")
    a(f"s_add_u32 s40, s40, {WS_UX}")
    a(f"s_mul_i32 s41, s3, {16*UXP}")
    a("s_add_u32 s41, s41, s40")
    a(f"s_mul_i32 s42, s3, {2*UXP}")
    a("s_add_u32 s42, s42, s40")
    a(f"s_add_u32 s42, s42, {64*UXP}")
    a("s_lshl_b32 s43, s3, 16")
    a("s_add_u32 s43, s43, s38")
    a("s_mov_b32 s44, s43")
    a("s_lshl_b32 s45, s3, 11")
    a("s_lshl_b32 s46, s3, 8")
    a("s_add_u32 s46, s46, 8192")
    a("s_add_u32 s47, s45, 9216")
    a("s_mov_b32 s48, 0")
    a("s_mov_b32 s49, 0")
    def dma():
        a(f"s_cmp_eq_u32 s49, {NA}")
        a("s_cselect_b32 s16, s8, s16")
        a("s_cselect_b32 s17, s9, s17")
        a(f"s_cselect_b32 s18, {4608*4096}, s18")
        a("s_cselect_b32 s43, s44, s43")
        a("s_add_u32 s50, s48, s45")
        a("s_mov_b32 m0, s50")
        a("s_add_u32 s50, s48, s47")
        a(f"buffer_load_dwordx4 v{VU0}, s[12:15], s41 offen lds")
        a(f"buffer_load_dwordx4 v{VU1}, s[12:15], s41 offen offset:1024 lds")
        a("s_mov_b32 m0, s50")
        a("s_add_u32 s50, s48, s46")
        a(f"buffer_load_dwordx4 v{VS0}, s[16:19], s43 offen" + NTS + " lds")
        a(f"buffer_load_dwordx4 v{VS1}, s[16:19], s43 offen offset:1024" + NTS + " lds")
        a("s_mov_b32 m0, s50")
        a("s_mov_b64 exec, 0xffff")
        a(f"buffer_load_dwordx4 v{VUQ}, s[12:15], s42 offen lds")
        a("s_mov_b64 exec, -1")
        a("s_add_u32 s41, s41, 128")
        a("s_add_u32 s42, s42, 128")
        a(f"s_add_u32 s43, s43, {64*4096}")
        a("s_add_u32 s49, s49, 1")
        a(f"s_add_u32 s48, s48, {STG}")
        a(f"s_cmp_ge_u32 s48, {R*STG}")
        a("s_cselect_b32 s48, 0, s48")
    for i in range(R - 1): dma()
    a(f"s_waitcnt vmcnt({5*(R-3)})")
    a("s_barrier")
    st(2)
    a("s_mov_b32 s53, 0")
    a.label("K3_LLOOP")
    a(f"s_waitcnt vmcnt({5*(R-4)})")
    a("s_barrier")
    dma()
    a("s_add_u32 s53, s53, 1")
    a(f"s_cmp_lt_u32 s53, {NA+NB-(R-1)}")
    a("s_cbranch_scc1 K3_LLOOP")
    for t in range(R - 1):
        a(f"s_waitcnt vmcnt({max(0, 5*(R-4-t))})")
        a("s_barrier")
    st(3)
    a("s_waitcnt vmcnt(0)")
    st(4); rt(5)
    a("s_add_u32 s3, s3, 4")
    dump(6, "s3")
    a("s_endpgm")
    a.label("K3_CONS")
    VA, VB0, VB1, CA, CB0, CB1 = 2, 3, 4, 5, 6, 7
    a("s_and_b32 s40, s3, 1")
    a("s_lshr_b32 s41, s3, 1")
    a("v_and_b32 v13, 15, v1")
    a("v_lshrrev_b32 v14, 4, v1")
    a("v_bfe_u32 v16, v1, 1, 3")
    a("v_xor_b32 v15, v14, v16")
    a("v_lshlrev_b32 v13, 7, v13")
    a(f"v_lshl_add_u32 v{VA}, v15, 4, v13")
    a("s_mul_i32 s42, s40, 6144")
    a(f"v_add_u32 v{VA}, s42, v{VA}")
    a("v_bfe_u32 v13, v1, 2, 2")
    a("v_lshl_add_u32 v15, v14, 3, v13")
    a("v_lshlrev_b32 v15, 7, v15")
    a("v_bfe_u32 v16, v1, 1, 1")
    a("s_lshl_b32 s42, s41, 2")
    a("v_add_u32 v16, s42, v16")
    a("v_bfe_u32 v17, v1, 3, 1")
    a("v_lshlrev_b32 v17, 1, v17")
    a("v_xor_b32 v16, v16, v17")
    a("v_and_b32 v17, 1, v14")
    a("v_lshlrev_b32 v17, 2, v17")
    a("v_xor_b32 v16, v16, v17")
    a("v_lshl_add_u32 v15, v16, 4, v15")
    a("v_and_b32 v16, 1, v1")
    a("v_lshl_add_u32 v15, v16, 3, v15")
    a(f"v_add_u32 v{VB0}, 9216, v15")
    a(f"v_xor_b32 v{VB1}, 32, v{VB0}")
    CA2 = 8
    ACA, ACB = 16, 40
    FR = [64, 104, 144]
    def read_list(setn):
        f = FR[setn]; L = []
        for k in range(2):
            for mi in range(3):
                L.append(f"ds_read_b128 v[{f+20*k+4*mi}:{f+20*k+4*mi+3}], v{CA if k == 0 else CA2} offset:{mi*2048}")
            for ni, cb in enumerate((CB0, CB1)):
                L.append(f"ds_read_b64_tr_b16 v[{f+20*k+12+4*ni}:{f+20*k+12+4*ni+1}], v{cb} offset:{k*4096}")
                L.append(f"ds_read_b64_tr_b16 v[{f+20*k+12+4*ni+2}:{f+20*k+12+4*ni+3}], v{cb} offset:{k*4096+512}")
        return L
    def mfma_list(setn, ty, acc, first, nm):
        f = FR[setn]; L = []
        for k in range(2):
            for mi in range(nm):
                for ni in range(2):
                    c = acc + (mi * 2 + ni) * 4
                    src = "0" if (first and k == 0) else f"v[{c}:{c+3}]"
                    L.append(f"v_mfma_f32_16x16x32_{ty} v[{c}:{c+3}], v[{f+20*k+4*mi}:{f+20*k+4*mi+3}], v[{f+20*k+12+4*ni}:{f+20*k+12+4*ni+3}], {src}")
        return L
    def addrs():
        a(f"v_add_u32 v{CA}, s52, v{VA}")
        a(f"v_add_u32 v{CB0}, s52, v{VB0}")
        a(f"v_add_u32 v{CB1}, s52, v{VB1}")
        a(f"v_xor_b32 v{CA2}, 64, v{CA}")
    def adv():
        a(f"s_add_u32 s52, s52, {STG}")
        a(f"s_cmp_ge_u32 s52, {R*STG}")
        a("s_cselect_b32 s52, 0, s52")
        addrs()
    def rlist(setn, nm):
        rl = read_list(setn)
        if nm == 2: rl = [x for x in rl if "offset:4096" not in x or "tr_b16" in x]
        return rl
    def it(par, ty, acc, nm, first=False):
        adv()
        if nm == 2:
            global PFL
            PFL[0] += 1
            a("s_cmp_lg_u32 s90, s89")
            a(f"s_cbranch_scc1 K3_NPF{PFL[0]}")
            a("buffer_load_dword v241, v240, s[84:87], s88 offen")
            a(f"s_add_u32 s88, s88, {NSH*64*4096}")
            a(f"s_add_u32 s89, s89, {NSH}")
            a.label(f"K3_NPF{PFL[0]}")
            a("s_add_u32 s90, s90, 1")
        rl = rlist((par + 2) % 3, nm)
        a(f"s_waitcnt lgkmcnt({len(rl)})")
        a("s_barrier")
        ml = mfma_list(par, ty, acc, first, nm)
        ri = 0
        for i, mline in enumerate(ml):
            a(mline)
            want = min(len(rl), (i + 1) * 2)
            while ri < want:
                a(rl[ri]); ri += 1
    for wm in range(2):
        nm = 3 - wm
        if wm == 0:
            a("s_cmp_eq_u32 s40, 1")
            a("s_cbranch_scc1 K3_C1")
        else:
            a.label("K3_C1")
        if wm == 1:
            a("v_lshlrev_b32 v240, 12, v1")
            a("s_mov_b32 s84, s8")
            a("s_mov_b32 s85, s9")
            a(f"s_mov_b32 s86, {4608*4096}")
            a("s_mov_b32 s87, 0x00020000")
            a(f"s_and_b32 s89, s37, {NSH-1}")
            a("s_lshl_b32 s88, s89, 18")
            a("s_add_u32 s88, s88, s38")
            a("s_add_u32 s89, s89, 2")
            a("s_cmp_lg_u32 s3, 1" if not NTS else "s_cmp_lg_u32 s3, 77")
            a("s_cselect_b32 s89, 1000, s89")
            a("s_cbranch_scc1 K3_NOPF0")
            for q in range(PFI // NSH):
                a("buffer_load_dword v241, v240, s[84:87], s88 offen")
                a(f"s_add_u32 s88, s88, {NSH*64*4096}")
            a.label("K3_NOPF0")
            a("s_mov_b32 s90, 0")
        a("s_barrier")
        a("s_mov_b32 s52, 0")
        addrs()
        for x in rlist(0, nm): a(x)
        adv()
        for x in rlist(1, nm): a(x)
        st(2)
        it(0, "f16", ACA, nm, True); it(1, "f16", ACA, nm); it(2, "f16", ACA, nm)
        a("s_mov_b32 s53, 0")
        a.label(f"K3_LA{wm}")
        it(0, "f16", ACA, nm); it(1, "f16", ACA, nm); it(2, "f16", ACA, nm)
        a("s_add_u32 s53, s53, 1")
        a("s_cmp_lt_u32 s53, 2")
        a(f"s_cbranch_scc1 K3_LA{wm}")
        it(0, "bf16", ACB, nm, True); it(1, "bf16", ACB, nm); it(2, "bf16", ACB, nm)
        a("s_mov_b32 s53, 0")
        a.label(f"K3_LB{wm}")
        it(0, "bf16", ACB, nm); it(1, "bf16", ACB, nm); it(2, "bf16", ACB, nm)
        a("s_add_u32 s53, s53, 1")
        a("s_cmp_lt_u32 s53, 22")
        a(f"s_cbranch_scc1 K3_LB{wm}")
        it(0, "bf16", ACB, nm); it(1, "bf16", ACB, nm)
        a("v_and_b32 v9, 15, v1")
        a("v_lshrrev_b32 v10, 4, v1")
        a("v_mul_u32_u24 v11, 1152, v9")
        a("v_lshl_add_u32 v11, v10, 3, v11")
        a("s_lshl_b32 s54, s36, 6")
        a("s_lshl_b32 s55, s41, 5")
        a("s_add_u32 s54, s54, s55")
        a("s_mul_i32 s54, s54, 1152")
        a("s_lshl_b32 s55, s39, 1")
        a("s_add_u32 s54, s54, s55")
        a(f"s_add_u32 s54, s54, {96*wm}")
        XR = 200
        for mi in range(nm):
            for ni in range(2):
                a(f"s_add_u32 s55, s54, {ni*16*1152+mi*32}")
                a(f"buffer_load_dwordx2 v[{XR+(mi*2+ni)*2}:{XR+(mi*2+ni)*2+1}], v11, s[20:23], s55 offen")
        a("v_lshlrev_b32 v12, 1, v9")
        a("s_lshl_b32 s55, s41, 6")
        a("s_add_u32 s55, s55, s38")
        for ni in range(2):
            a(f"buffer_load_ushort v{220+ni}, v12, s[32:35], s55 offen offset:{32*ni}")
        it(2, "bf16", ACB, nm)
        st(3)
        a("s_waitcnt vmcnt(0)")
        a("v_lshlrev_b32 v220, 16, v220")
        a("v_lshlrev_b32 v221, 16, v221")
        if wm == 1:
            a("v_cmp_gt_u32 vcc, 2, v10")
        for mi in range(nm):
            for ni in range(2):
                t = mi * 2 + ni
                A_ = ACA + t * 4; B_ = ACB + t * 4
                xr = XR + t * 2
                T = 224
                a(f"v_cvt_pk_bf16_f32 v{T}, v{A_}, v{A_+1}")
                a(f"v_cvt_pk_bf16_f32 v{T+1}, v{A_+2}, v{A_+3}")
                a(f"v_cvt_pk_bf16_f32 v{T+2}, v{B_}, v{B_+1}")
                a(f"v_cvt_pk_bf16_f32 v{T+3}, v{B_+2}, v{B_+3}")
                def unp(dst, src):
                    a(f"v_lshlrev_b32 v{dst}, 16, v{src}")
                    a(f"v_and_b32 v{dst+1}, 0xffff0000, v{src}")
                unp(A_, T); unp(A_ + 2, T + 1); unp(B_, T + 2); unp(B_ + 2, T + 3)
                unp(T + 4, xr); unp(T + 6, xr + 1)
                a(f"v_pk_add_f32 v[{A_}:{A_+1}], v[{A_}:{A_+1}], v[{T+4}:{T+5}]")
                a(f"v_pk_add_f32 v[{A_+2}:{A_+3}], v[{A_+2}:{A_+3}], v[{T+6}:{T+7}]")
                for r in range(4):
                    a(f"v_add_f32 v{B_+r}, v{B_+r}, v{220+ni}")
                a(f"v_cvt_pk_bf16_f32 v{T}, v{A_}, v{A_+1}")
                a(f"v_cvt_pk_bf16_f32 v{T+1}, v{A_+2}, v{A_+3}")
                a(f"v_cvt_pk_bf16_f32 v{T+2}, v{B_}, v{B_+1}")
                a(f"v_cvt_pk_bf16_f32 v{T+3}, v{B_+2}, v{B_+3}")
                unp(A_, T); unp(A_ + 2, T + 1); unp(B_, T + 2); unp(B_ + 2, T + 3)
                a(f"v_pk_add_f32 v[{A_}:{A_+1}], v[{A_}:{A_+1}], v[{B_}:{B_+1}]")
                a(f"v_pk_add_f32 v[{A_+2}:{A_+3}], v[{A_+2}:{A_+3}], v[{B_+2}:{B_+3}]")
                a(f"v_cvt_pk_bf16_f32 v{A_}, v{A_}, v{A_+1}")
                a(f"v_cvt_pk_bf16_f32 v{A_+1}, v{A_+2}, v{A_+3}")
                a(f"s_add_u32 s55, s54, {ni*16*1152+mi*32}")
                if wm == 1 and mi == 1:
                    a("s_and_saveexec_b64 s[58:59], vcc")
                a(f"buffer_store_dwordx2 v[{A_}:{A_+1}], v11, s[24:27], s55 offen")
                if wm == 1 and mi == 1:
                    a("s_mov_b64 exec, s[58:59]")
        st(4); rt(5)
        dump(6, "s3")
        a("s_endpgm")
    a.label("K3_END")
    a("s_endpgm")
    return insert_hazard_nops(a.lines), 248
```
